```python
import torch

def _softmax(x, axis=-1):
    return torch.softmax(x, dim=axis)
def _gelu(x):
    return torch.nn.functional.gelu(x, approximate="tanh")
def _silu(x):
    return torch.nn.functional.silu(x)
def _sigmoid(x):
    return torch.sigmoid(x)
def _layernorm(x, axis=-1, eps=1e-5):
    m = x.mean(dim=axis, keepdim=True)
    v = x.var(dim=axis, keepdim=True, unbiased=False)
    return (x - m) / torch.sqrt(v + eps)
def _scatter_add(tgt, idx, src, axis=0):
    return tgt.clone().index_add_(axis, idx, src)
def _segment_sum(src, seg, n):
    out = torch.zeros((n,) + src.shape[1:], dtype=src.dtype)
    return out.index_add_(0, seg, src)
def _pad(x, pw):
    flat = tuple(v for pair in reversed(pw) for v in pair)
    return torch.nn.functional.pad(x, flat)

kernel_name = 'sequential_preLN__compressed_kv_cla__mixer_token_mlp__prompt'

def setup_inputs():

    _w = (lambda a: (lambda t: t.to(torch.bfloat16) if t.is_floating_point() else t)(torch.as_tensor(a)))
    def _A_setup():
        B, H, Sq, Sk, D, M = 1, 32, 2048, 2048, 128, 512
        Dc = 4 * D
        return {
            "x": _w((lambda *s: torch.randn(*s, dtype=torch.bfloat16) * 0.05)(B, Sq, M)),
            "c_kv": _w((lambda *s: torch.randn(*s, dtype=torch.bfloat16) * 0.2)(B, Sk, Dc)),
            "w_q": _w((lambda *s: torch.randn(*s, dtype=torch.bfloat16) * 3.2)(M, H, D) * (M ** -0.5)),
            "w_uk": _w((lambda *s: torch.randn(*s, dtype=torch.bfloat16) * 6.4)(Dc, H, D) * (Dc ** -0.5)),
            "w_uv": _w((lambda *s: torch.randn(*s, dtype=torch.bfloat16) * 0.2)(Dc, H, D) * (Dc ** -0.5)),
            "w_o": _w((lambda *s: torch.randn(*s, dtype=torch.bfloat16) * 0.2)(H, D, M) * ((H * D) ** -0.5)),
        }
    _A_in = _A_setup()

    def _B_setup():
        B, S, D, F = 1, 2048, 512, 1792
        return {
            "x": _w((lambda *s: torch.randn(*s, dtype=torch.bfloat16) * 0.05)(B, S, D)),
            "w1": _w((lambda *s: torch.randn(*s, dtype=torch.bfloat16) * 0.4)(S, F) * (S ** -0.5)),
            "b1": _w((lambda *s: torch.randn(*s, dtype=torch.bfloat16) * 3.2)(F) * 0.02),
            "w2": _w((lambda *s: torch.randn(*s, dtype=torch.bfloat16) * 0.2)(F, S) * (F ** -0.5)),
            "b2": _w((lambda *s: torch.randn(*s, dtype=torch.bfloat16) * 0.4)(S) * 0.02),
        }
    _B_in = _B_setup()

    return {
        "A_x": _A_in["x"],
        "A_c_kv": _A_in["c_kv"],
        "A_w_q": _A_in["w_q"],
        "A_w_uk": _A_in["w_uk"],
        "A_w_uv": _A_in["w_uv"],
        "A_w_o": _A_in["w_o"],
        "B_x": _B_in["x"],
        "B_w1": _B_in["w1"],
        "B_b1": _B_in["b1"],
        "B_w2": _B_in["w2"],
        "B_b2": _B_in["b2"],
    }

def reference(A_x, A_c_kv, A_w_q, A_w_uk, A_w_uv, A_w_o, B_x, B_w1, B_b1, B_w2, B_b2):
    def _A_ref(x, c_kv, w_q, w_uk, w_uv, w_o):
        B, Sq, M = x.shape[0], x.shape[1], x.shape[2]
        Sk = c_kv.shape[1]
        H, D = w_q.shape[1], w_q.shape[2]
        q = torch.einsum("bqm,mhd->bhqd", x, w_q)
        k = torch.einsum("bkc,chd->bhkd", c_kv, w_uk)
        v = torch.einsum("bkc,chd->bhkd", c_kv, w_uv)
        scores = torch.einsum("bhqd,bhkd->bhqk", q, k) * (D ** -0.5)
        off = Sk - Sq
        qi = torch.arange(Sq)[:, None]
        kj = torch.arange(Sk)[None, :]
        cmask = kj <= (qi + off)
        scores = torch.where(cmask[None, None], scores, -1e9)
        p = _softmax(scores, axis=-1)
        ctx = torch.einsum("bhqk,bhkd->bhqd", p, v)
        return torch.einsum("bhqd,hdm->bqm", ctx, w_o)

    def _B_ref(x, w1, b1, w2, b2):
        B, S, D = x.shape
        h = _layernorm(x, axis=-1)
        u = torch.einsum("bsd,sf->bdf", h, w1) + b1
        u = _gelu(u)
        y = torch.einsum("bdf,fs->bds", u, w2) + b2
        return (lambda x, *d: x.permute(*d))(y, 0, 2, 1)

    x = A_x
    h = x + _A_ref(_layernorm(x, axis=-1), A_c_kv, A_w_q, A_w_uk, A_w_uv, A_w_o)
    h2 = h + _B_ref(_layernorm(h, axis=-1), B_w1, B_b1, B_w2, B_b2)
    return h2
```

```python
from genlib import *
from gen_gemm import lane_consts, f2u

def attn_kernel(name):
    k = Kern(name, 512, 131072, 256)
    end = k.newlabel("end")
    k.e("s_cmp_ge_u32 s2, 256"); k.e(f"s_cbranch_scc1 {end}")
    lane, wv = lane_consts(k)
    k.srd(8, A_WS, 16 * MB, WS_Q); k.srd(12, A_WS, 16 * MB, WS_K); k.srd(16, A_WS, 16 * MB, WS_V)
    k.srd(20, A_WS, 16 * MB, WS_CTX)
    k.srd_finish()
    k.e("s_and_b32 s36, s2, 7"); k.e("s_lshl_b32 s36, s36, 2"); k.e("s_bfe_u32 s37, s2, 0x20003")
    k.e("s_add_u32 s36, s36, s37")
    k.e("s_lshr_b32 s37, s2, 5")
    k.e("s_lshr_b32 s38, s3, 2")
    k.e("s_and_b32 s39, s3, 3")
    l16 = k.valloc()
    dmv = k.valloc()
    vK = k.valloc(); vV = k.valloc()
    k.e(f"v_lshlrev_b32 v{l16}, 4, v{lane}")
    k.e("s_lshl_b32 s48, s39, 12"); k.e(f"v_add_u32 v{dmv}, s48, v{l16}")
    thr = k.valloc()
    t0 = k.valloc(); t1 = k.valloc(); t2 = k.valloc(); t3 = k.valloc()
    k.e(f"v_and_b32 v{thr}, 31, v{lane}"); k.e("s_lshl_b32 s48, s39, 5"); k.e(f"v_add_u32 v{thr}, s48, v{thr}")
    k.e("s_lshl_b32 s48, s38, 6"); k.e(f"v_subrev_u32 v{thr}, s48, v{thr}")
    k.e(f"v_lshrrev_b32 v{t0}, 5, v{lane}"); k.e(f"v_lshlrev_b32 v{t0}, 2, v{t0}"); k.e(f"v_sub_u32 v{thr}, v{thr}, v{t0}")
    ninf = k.valloc(); k.e(f"v_mov_b32 v{ninf}, 0xff800000")
    Q = k.valloc(32, 4); O = k.valloc(64, 4); S = k.valloc(32, 4); NM = k.valloc(16, 4); P = k.valloc(16, 4)
    FR = k.valloc(32, 4)
    ls = k.valloc(4, 2); mx = k.valloc(2, 2)
    k.e("s_cmp_lt_u32 s39, 2"); k.e("s_cselect_b32 s49, s38, 0")
    k.e("s_lshl_b32 s50, s38, 16")
    k.e("s_lshl_b32 s51, s36, 19"); k.e("s_lshl_b32 s48, s38, 14"); k.e("s_add_u32 s51, s51, s48")

    def dma_tile(srd, soff, m0reg):
        k.e(f"s_mov_b32 m0, s{m0reg}"); k.e("s_nop 0")
        for i in range(4):
            k.e(f"buffer_load_dwordx4 v{dmv}, {sr(srd, 4)}, s{soff} offen offset:{i * 1024} lds")

    def seq_pv():
        return [("v", (kc * 4 + db) * 1024, O + 16 * db, "A", P + 4 * kc, None) for kc in range(4) for db in range(4)]
    def seq_qk():
        out = []
        for ds in range(8):
            for kb in range(2):
                out.append(("k", (kb * 8 + ds) * 1024, S + 16 * kb, "A", Q + 4 * ds, NM if ds == 0 else None))
        return out
    PRE = 7
    def rd(seq, i):
        t, off = seq[i][0], seq[i][1]
        k.e(f"ds_read_b128 {vr(FR + 4 * (i % 8), 4)}, v{vK if t == 'k' else vV} offset:{off}")
    def preread(seq):
        for i in range(PRE): rd(seq, i)
    def mphase(seq):
        n = len(seq)
        for i in range(n):
            later = min(n - 1, i + PRE - 1) - i
            k.e(f"s_waitcnt lgkmcnt({later})")
            _, _, acc, _, b, ci = seq[i]
            mfma(k, acc, FR + 4 * (i % 8), b, ci)
            if i + PRE < n: rd(seq, i + PRE)
        k.e("s_waitcnt vmcnt(0)")
        k.nops(10)
        k.e("s_barrier")

    def softmax(slow, back):
        k.e(f"v_max3_f32 v{mx}, v{S}, v{S + 1}, v{S + 2}")
        k.e(f"v_max3_f32 v{mx + 1}, v{S + 16}, v{S + 17}, v{S + 18}")
        for i in range(3, 15, 2):
            k.e(f"v_max3_f32 v{mx}, v{mx}, v{S + i}, v{S + i + 1}")
            k.e(f"v_max3_f32 v{mx + 1}, v{mx + 1}, v{S + 16 + i}, v{S + 16 + i + 1}")
        k.e(f"v_max3_f32 v{mx}, v{mx}, v{S + 15}, v{S + 31}")
        k.e(f"v_max_f32 v{mx}, v{mx}, v{mx + 1}")
        k.e(f"v_cmp_lt_f32 vcc, 0x41000000, v{mx}")
        k.e("s_cmp_lg_u32 s47, 0"); k.e(f"s_cbranch_scc1 {slow}")
        k.e(f"s_cbranch_vccnz {slow}")
        k.label(back)
        for i in range(17):
            if i < 16:
                k.e(f"v_exp_f32 v{S + 2 * i}, v{S + 2 * i}"); k.e(f"v_exp_f32 v{S + 2 * i + 1}, v{S + 2 * i + 1}")
            if i > 0:
                a = S + 2 * (i - 1)
                if i == 16: k.e("s_nop 0")
                k.e(f"v_pk_add_f32 {vr(ls + 2 * (i % 2), 2)}, {vr(ls + 2 * (i % 2), 2)}, {vr(a, 2)}")
                k.e(f"v_cvt_pk_bf16_f32 v{P + i - 1}, v{a}, v{a + 1}")

    def slowpath(slow, back):
        k.label(slow)
        k.e(f"v_mov_b32 v{t0}, v{mx}"); k.e("s_nop 1")
        k.e(f"v_permlane32_swap_b32 v{mx}, v{t0}"); k.e("s_nop 1")
        k.e(f"v_max_f32 v{mx}, v{mx}, v{t0}")
        nf = k.newlabel("nf"); dn = k.newlabel("dn")
        k.e("s_cmp_lg_u32 s47, 0"); k.e(f"s_cbranch_scc1 {dn}")
        k.e(f"v_max_f32 v{mx}, 0, v{mx}")
        k.e(f"v_sub_f32 v{t0}, 0, v{mx}"); k.e(f"v_exp_f32 v{t0}, v{t0}"); k.e("s_nop 0")
        for i in range(64): k.e(f"v_mul_f32 v{O + i}, v{O + i}, v{t0}")
        for i in range(4): k.e(f"v_mul_f32 v{ls + i}, v{ls + i}, v{t0}")
        k.label(dn)
        k.e("s_mov_b32 s47, 0")
        for i in range(32): k.e(f"v_sub_f32 v{S + i}, v{S + i}, v{mx}")
        for i in range(16): k.e(f"v_sub_f32 v{NM + i}, v{NM + i}, v{mx}")
        k.e(f"s_branch {back}")

    def toggles():
        k.e(f"v_xor_b32 v{vK}, 0x4000, v{vK}"); k.e(f"v_xor_b32 v{vV}, 0x4000, v{vV}")

    def vphase_dma():
        sk = k.newlabel("sk"); sv = k.newlabel("sv")
        k.e("s_add_u32 s48, s41, 2"); k.e("s_cmp_gt_u32 s48, s42"); k.e(f"s_cbranch_scc1 {sk}")
        dma_tile(12, 43, 45)
        k.label(sk)
        dma_tile(16, 44, 46)
        k.e("s_add_u32 s43, s43, 0x8000"); k.e("s_add_u32 s44, s44, 0x8000")
        k.e("s_xor_b32 s45, s45, 0x4000"); k.e("s_xor_b32 s46, s46, 0x4000")

    slow1, back1, slow2, back2 = [k.newlabel(x) for x in ("slow", "back", "slow", "back")]
    blk = k.newlabel("blk"); loop = k.newlabel("loop"); last = k.newlabel("last")
    k.e("s_mov_b32 s52, 0"); k.e("s_sub_u32 s42, 15, s37")
    k.label(blk)
    k.e("s_lshl_b32 s48, s36, 19"); k.e("s_lshl_b32 s53, s42, 15"); k.e("s_add_u32 s48, s48, s53")
    k.e("s_lshl_b32 s53, s39, 13"); k.e("s_add_u32 s48, s48, s53")
    for ds in range(8):
        k.e(f"s_add_u32 s53, s48, {ds * 1024}")
        k.e(f"buffer_load_dwordx4 {vr(Q + 4 * ds, 4)}, v{l16}, {sr(8, 4)}, s53 offen")
    k.e("s_lshl_b32 s48, s39, 12")
    k.e("s_add_u32 s45, s50, s48")
    k.e("s_add_u32 s46, s45, 0x8000")
    k.e("s_mov_b32 s43, s51"); k.e("s_mov_b32 s44, s51")
    dma_tile(12, 43, 45); dma_tile(16, 44, 46)
    k.e("s_add_u32 s43, s43, 0x8000"); k.e("s_add_u32 s44, s44, 0x8000")
    k.e("s_xor_b32 s45, s45, 0x4000"); k.e("s_xor_b32 s46, s46, 0x4000")
    nk1 = k.newlabel("nk1")
    k.e("s_cmp_eq_u32 s42, 0"); k.e(f"s_cbranch_scc1 {nk1}")
    dma_tile(12, 43, 45)
    k.label(nk1)
    k.e("s_add_u32 s43, s43, 0x8000"); k.e("s_xor_b32 s45, s45, 0x4000")
    k.e(f"v_add_u32 v{vK}, s50, v{l16}"); k.e(f"v_add_u32 v{vV}, 0xc000, v{vK}")
    for i in range(64): k.e(f"v_mov_b32 v{O + i}, 0")
    for i in range(16): k.e(f"v_mov_b32 v{NM + i}, 0")
    for i in range(4): k.e(f"v_mov_b32 v{ls + i}, 0")
    k.e("s_mov_b32 s47, 1"); k.e("s_mov_b32 s41, 0")
    k.e("s_waitcnt vmcnt(0)"); k.e("s_barrier")
    g0a = k.newlabel("g0a")
    k.e("s_cmp_eq_u32 s38, 0"); k.e(f"s_cbranch_scc1 {g0a}"); k.e("s_barrier"); k.label(g0a)
    preread(seq_qk()); mphase(seq_qk())
    k.e("s_cmp_eq_u32 s42, 0"); k.e(f"s_cbranch_scc1 {last}")
    k.label(loop)
    vphase_dma()
    softmax(slow1, back1)
    toggles()
    sq = seq_pv() + seq_qk()
    preread(sq)
    k.e("s_barrier")
    mphase(sq)
    k.e("s_add_u32 s41, s41, 1"); k.e("s_cmp_lt_u32 s41, s42"); k.e(f"s_cbranch_scc1 {loop}")
    k.label(last)
    skipl = k.newlabel("skipl"); skip2 = k.newlabel("skip2")
    k.e("s_cmp_lg_u32 s49, 0"); k.e(f"s_cbranch_scc1 {skipl}")
    for r0 in range(0, 32, 4):
        for e4 in range(4):
            r = r0 + e4; c = 32 * (r // 16) + 8 * ((r % 16) // 4) + (r % 4)
            k.e(f"v_cmp_lt_i32 {sr(54 + 2 * e4, 2)}, v{thr}, {c}")
        k.e("s_nop 1")
        for e4 in range(4):
            k.e(f"v_cndmask_b32 v{S + r0 + e4}, v{S + r0 + e4}, v{ninf}, {sr(54 + 2 * e4, 2)}")
    softmax(slow2, back2)
    toggles()
    preread(seq_pv())
    k.e("s_barrier")
    mphase(seq_pv())
    k.e(f"s_branch {skip2}")
    k.label(skipl)
    k.e("s_barrier"); k.e("s_barrier")
    k.label(skip2)
    g1a = k.newlabel("g1a")
    k.e("s_cmp_eq_u32 s38, 1"); k.e(f"s_cbranch_scc1 {g1a}"); k.e("s_barrier"); k.label(g1a)
    k.e(f"v_add_f32 v{ls}, v{ls}, v{ls + 1}"); k.e(f"v_add_f32 v{ls + 2}, v{ls + 2}, v{ls + 3}")
    k.e(f"v_add_f32 v{ls}, v{ls}, v{ls + 2}"); k.e(f"v_mov_b32 v{t0}, v{ls}"); k.e("s_nop 1")
    k.e(f"v_permlane32_swap_b32 v{ls}, v{t0}"); k.e("s_nop 1")
    k.e(f"v_add_f32 v{mx + 1}, v{ls}, v{t0}")
    k.e(f"v_sub_f32 v{mx}, 0, v{NM}")
    k.e(f"v_mov_b32 v{t0}, 0xf149f2ca")
    k.e("s_cmp_lg_u32 s47, 0"); k.e("s_cselect_b64 vcc, -1, 0")
    k.e(f"v_cndmask_b32 v{mx}, v{mx}, v{t0}, vcc")
    k.e("s_lshl_b32 s48, s3, 13")
    k.e(f"v_add_u32 v{t1}, s48, v{l16}")
    k.e("s_xor_b32 s53, s3, 4"); k.e("s_lshl_b32 s53, s53, 13"); k.e(f"v_add_u32 v{t2}, s53, v{l16}")
    k.e("s_lshl_b32 s48, s3, 9"); k.e("s_add_u32 s48, s48, 0x10000")
    k.e(f"v_lshlrev_b32 v{t3}, 3, v{lane}"); k.e(f"v_add_u32 v{t0}, s48, v{t3}")
    k.e(f"ds_write_b64 v{t0}, {vr(mx, 2)}")
    k.e("s_xor_b32 s48, s48, 0x800"); k.e(f"v_add_u32 v{t3}, s48, v{t3}")
    mg1 = k.newlabel("mg1"); mgd = k.newlabel("mgd")
    k.e("s_cmp_eq_u32 s38, 1"); k.e(f"s_cbranch_scc1 {mg1}")
    def merge(g):
        keep = O + 32 * g; send = O + 32 * (1 - g)
        for i in range(8): k.e(f"ds_write_b128 v{t1}, {vr(send + 4 * i, 4)} offset:{i * 1024}")
        k.e("s_waitcnt lgkmcnt(0)"); k.e("s_barrier")
        k.e(f"ds_read_b64 {vr(ls, 2)}, v{t3}")
        for i in range(8): k.e(f"ds_read_b128 {vr(S + 4 * i, 4)}, v{t2} offset:{i * 1024}")
        k.e("s_waitcnt lgkmcnt(8)")
        k.e(f"v_max_f32 v{t0}, v{mx}, v{ls}")
        k.e(f"v_sub_f32 v{mx}, v{mx}, v{t0}"); k.e(f"v_sub_f32 v{ls}, v{ls}, v{t0}")
        k.e(f"v_exp_f32 v{mx}, v{mx}"); k.e(f"v_exp_f32 v{ls}, v{ls}"); k.e("s_nop 0")
        k.e(f"v_mul_f32 v{t0}, v{mx}, v{mx + 1}"); k.e(f"v_fmac_f32 v{t0}, v{ls}, v{ls + 1}")
        k.e(f"v_rcp_f32 v{t0}, v{t0}"); k.e("s_nop 0")
        k.e(f"v_mul_f32 v{mx}, v{mx}, v{t0}"); k.e(f"v_mul_f32 v{ls}, v{ls}, v{t0}")
        k.e("s_waitcnt lgkmcnt(0)")
        for i in range(32):
            k.e(f"v_mul_f32 v{keep + i}, v{keep + i}, v{mx}")
            k.e(f"v_fmac_f32 v{keep + i}, v{S + i}, v{ls}")
        k.e("s_lshl_b32 s48, s42, 2"); k.e("s_add_u32 s48, s48, s39"); k.e("s_lshl_b32 s48, s48, 18")
        k.e("s_lshl_b32 s53, s36, 13"); k.e("s_add_u32 s48, s48, s53")
        for f in range(4):
            for i in range(4):
                k.e(f"v_cvt_pk_bf16_f32 v{P + 4 * f + i}, v{keep + 8 * f + 2 * i}, v{keep + 8 * f + 2 * i + 1}")
            k.e(f"s_add_u32 s53, s48, {(4 * g + f) * 1024}")
            k.e(f"buffer_store_dwordx4 {vr(P + 4 * f, 4)}, v{l16}, {sr(20, 4)}, s53 offen")
    merge(0); k.e(f"s_branch {mgd}"); k.label(mg1); merge(1); k.label(mgd)
    k.e("s_barrier")
    k.e("s_add_u32 s52, s52, 1"); k.e("s_mov_b32 s42, s37")
    k.e("s_cmp_lt_u32 s52, 2"); k.e(f"s_cbranch_scc1 {blk}")
    k.e(f"s_branch {end}")
    slowpath(slow1, back1); slowpath(slow2, back2)
    k.label(end)
    return k
```

```python
from genlib import *

SCALE_Q = 1.4426950408889634 / (128.0 ** 0.5)
import struct
def f2u(x): return struct.unpack("<I", struct.pack("<f", x))[0]

def lane_consts(k):
    lane = k.valloc()
    k.e(f"v_and_b32 v{lane}, 63, v0")
    t = k.valloc()
    k.e(f"v_lshrrev_b32 v{t}, 6, v0")
    k.e("s_nop 0")
    k.e(f"v_readfirstlane_b32 s3, v{t}")
    return lane, t

def w_frag_addr(k, lane, dst, rowbytes, perm, cb):
    t = k.valloc(); u = k.valloc()
    k.e(f"v_bfe_u32 v{t}, v{lane}, 2, 2")
    k.e(f"v_lshrrev_b32 v{u}, 5, v{lane}")
    k.e(f"v_lshlrev_b32 v{u}, {2 if perm else 3}, v{u}")
    k.e(f"v_add_u32 v{u}, v{u}, v{t}")
    k.e(f"v_mul_u32_u24 v{dst}, {rowbytes}, v{u}")
    if rowbytes >= 256:
        k.e(f"v_xor_b32 v{t}, {cb & 3}, v{t}")
        if cb >> 2:
            k.e(f"v_add_u32 v{t}, {(cb >> 2) << 2}, v{t}")
    else:
        k.e(f"v_lshrrev_b32 v{t}, 1, v{t}")
        k.e(f"v_xor_b32 v{t}, {cb}, v{t}")
    k.e(f"v_lshlrev_b32 v{t}, 6, v{t}")
    k.e(f"v_add_u32 v{dst}, v{dst}, v{t}")
    k.e(f"v_bfe_u32 v{t}, v{lane}, 4, 1")
    k.e(f"v_lshlrev_b32 v{t}, 5, v{t}")
    k.e(f"v_add_u32 v{dst}, v{dst}, v{t}")
    k.e(f"v_and_b32 v{t}, 3, v{lane}")
    k.e(f"v_lshlrev_b32 v{t}, 3, v{t}")
    k.e(f"v_add_u32 v{dst}, v{dst}, v{t}")
    k.nv = t

def w_dma_voff(k, lane, dst, rowbytes, gstride, piece_expr_reg):
    lpr = rowbytes // 16
    rpp = 1024 // rowbytes
    t = k.valloc(); u = k.valloc()
    sh = lpr.bit_length() - 1
    k.e(f"v_lshrrev_b32 v{t}, {sh}, v{lane}")
    k.e(f"v_and_b32 v{u}, {lpr - 1}, v{lane}")
    x = k.valloc()
    k.e(f"v_mul_u32_u24 v{x}, {rpp}, v{piece_expr_reg}")
    k.e(f"v_add_u32 v{t}, v{t}, v{x}")
    if rowbytes >= 256:
        k.e(f"v_and_b32 v{x}, 3, v{t}")
    else:
        k.e(f"v_bfe_u32 v{x}, v{t}, 1, 1")
    k.e(f"v_lshlrev_b32 v{x}, 2, v{x}")
    k.e(f"v_xor_b32 v{u}, v{u}, v{x}")
    k.e(f"v_lshlrev_b32 v{u}, 4, v{u}")
    k.e(f"s_mov_b32 s60, {gstride}")
    k.e(f"v_mul_lo_u32 v{dst}, s60, v{t}")
    k.e(f"v_add_u32 v{dst}, v{dst}, v{u}")
    k.nv = t

def x_dma_voff(k, lane, dst, piece_reg):
    t = k.valloc(); u = k.valloc(); x = k.valloc()
    k.e(f"v_lshrrev_b32 v{t}, 3, v{lane}")
    k.e(f"v_lshl_add_u32 v{t}, v{piece_reg}, 3, v{t}")
    k.e(f"v_and_b32 v{u}, 7, v{lane}")
    k.e(f"v_bfe_u32 v{x}, v{t}, 1, 3")
    k.e(f"v_xor_b32 v{u}, v{u}, v{x}")
    k.e(f"v_lshlrev_b32 v{u}, 4, v{u}")
    k.e(f"v_lshl_add_u32 v{dst}, v{t}, 10, v{u}")
    k.nv = t

def x_frag_addr(k, lane, dst, s):
    t = k.valloc(); u = k.valloc(); x = k.valloc()
    k.e(f"v_and_b32 v{t}, 31, v{lane}")
    k.e(f"v_lshrrev_b32 v{u}, 5, v{lane}")
    k.e(f"v_add_u32 v{u}, {2 * s}, v{u}")
    k.e(f"v_bfe_u32 v{x}, v{t}, 1, 3")
    k.e(f"v_xor_b32 v{u}, v{u}, v{x}")
    k.e(f"v_lshlrev_b32 v{u}, 4, v{u}")
    k.e(f"v_lshl_add_u32 v{dst}, v{t}, 7, v{u}")
    k.nv = t

def dma(k, voff, srd, soff, m0s, m0c):
    k.e(f"s_add_u32 m0, s{m0s}, 0x{m0c:x}")
    k.e("s_nop 0")
    k.e(f"buffer_load_dwordx4 v{voff}, {sr(srd, 4)}, s{soff} offen lds")

def dma_l(voff, srd, soff, m0s, m0c):
    return [f"s_add_u32 m0, s{m0s}, 0x{m0c:x}", "s_nop 0",
            f"buffer_load_dwordx4 v{voff}, {sr(srd, 4)}, s{soff} offen lds"]

def ln_row(k, d, xin, t):
    s, q, tmp = t, t + 1, t + 2
    k.e(f"v_add_f32 v{s}, v{xin}, v{xin + 1}")
    for i in range(2, 8):
        k.e(f"v_add_f32 v{s}, v{s}, v{xin + i}")
    wave_sum(k, s, tmp)
    k.e(f"v_mul_f32 v{s}, 0x{f2u(1.0 / 512):x}, v{s}")
    for i in range(8):
        k.e(f"v_sub_f32 v{xin + i}, v{xin + i}, v{s}")
    k.e(f"v_mul_f32 v{q}, v{xin}, v{xin}")
    for i in range(1, 8):
        k.e(f"v_fmac_f32 v{q}, v{xin + i}, v{xin + i}")
    wave_sum(k, q, tmp)
    k.e(f"v_mov_b32 v{tmp}, 0x{f2u(1e-5):x}")
    k.e(f"v_fmac_f32 v{tmp}, 0x{f2u(1.0 / 512):x}, v{q}")
    k.e(f"v_rsq_f32 v{tmp}, v{tmp}")
    k.e("s_nop 0")
    for i in range(8):
        k.e(f"v_mul_f32 v{xin + i}, v{xin + i}, v{tmp}")

def unpack8(k, dst, src):
    for i in range(4):
        k.e(f"v_lshlrev_b32 v{dst + 2 * i}, 16, v{src + i}")
        k.e(f"v_and_b32 v{dst + 2 * i + 1}, 0xffff0000, v{src + i}")

def pack8(k, dst, src):
    for i in range(4):
        k.e(f"v_cvt_pk_bf16_f32 v{dst + i}, v{src + 2 * i}, v{src + 2 * i + 1}")

def ln_x_rows(k, lane, row_sgpr, srd_x, srd_xn):
    save = k.nv
    off = k.valloc(); raw = k.valloc(4, 4); f = k.valloc(8, 4); t = k.valloc(3)
    k.e(f"s_lshl_b32 s61, s{row_sgpr}, 10")
    k.e(f"v_lshlrev_b32 v{off}, 4, v{lane}")
    k.e(f"buffer_load_dwordx4 {vr(raw, 4)}, v{off}, {sr(srd_x, 4)}, s61 offen")
    k.e("s_waitcnt vmcnt(0)")
    unpack8(k, f, raw)
    ln_row(k, None, f, t)
    pack8(k, raw, f)
    k.e(f"buffer_store_dwordx4 {vr(raw, 4)}, v{off}, {sr(srd_xn, 4)}, s61 offen")
    k.nv = save

def proj_kernel(name, kind):
    kv = kind == "kv"
    STG = 65536 if kv else 49152
    NS = 2 if kv else 3
    k = Kern(name, 512, STG * NS, 256)
    k.e("s_cmp_ge_u32 s2, 256"); end = k.newlabel("end"); k.e(f"s_cbranch_scc1 {end}")
    lane, wv = lane_consts(k)
    if kv:
        k.srd(8, A_CKV, 2 * MB); k.srd(12, A_WUK, 4 * MB); k.srd(16, A_WUV, 4 * MB)
        k.srd(20, A_WS, 16 * MB, WS_K); k.srd(24, A_WS, 16 * MB, WS_V)
        k.srd(28, A_X, 2 * MB); k.srd(32, A_WS, 2 * MB, WS_XN)
    else:
        k.srd(8, A_WS, 2 * MB, WS_XN); k.srd(12, A_WQ, 4 * MB); k.srd(20, A_WS, 16 * MB, WS_Q)
    k.srd_finish()
    k.e("s_and_b32 s36, s2, 7"); k.e("s_lshl_b32 s36, s36, 2"); k.e("s_bfe_u32 s37, s2, 0x20003")
    k.e("s_add_u32 s36, s36, s37")
    k.e("s_lshr_b32 s37, s2, 5")
    k.e("s_lshr_b32 s38, s3, 2")
    k.e("s_and_b32 s39, s3, 3")
    if kv:
        k.e("s_cmp_eq_u32 s38, 1")
        for i in range(2):
            k.e(f"s_cselect_b32 s{12 + i}, s{16 + i}, s{12 + i}")
            k.e(f"s_cselect_b32 s{20 + i}, s{24 + i}, s{20 + i}")
    pc = k.valloc()
    xv = [k.valloc() for _ in range(4)]
    for i in range(4):
        k.e(f"v_lshl_add_u32 v{pc}, v{wv}, 2, {i}")
        x_dma_voff(k, lane, xv[i], pc)
    nw = 4 if kv else 2
    wvv = [k.valloc() for _ in range(nw)]
    for i in range(nw):
        if kv:
            k.e(f"v_and_b32 v{pc}, 3, v{wv}"); k.e(f"v_lshl_add_u32 v{pc}, v{pc}, 2, {i}")
        else:
            k.e(f"v_lshl_add_u32 v{pc}, v{wv}, 1, {i}")
        w_dma_voff(k, lane, wvv[i], 256, 8192, pc)
    k.e("s_lshl_b32 s41, s37, 18"); k.e("s_lshl_b32 s42, s36, 8")
    k.e("s_lshl_b32 s43, s3, 12")
    k.e(f"s_lshl_b32 s44, s3, {12 if kv else 11}"); k.e("s_add_u32 s44, s44, 32768")
    nwin = (STG * NS + 65535) // 65536
    NW = 4 if kv else 2
    xa = [AddrReg(k, nwin) for _ in range(4)]
    for s in range(4):
        x_frag_addr(k, lane, xa[s].r0(), s)
        k.e(f"s_lshl_b32 s45, s39, 13")
        k.e(f"v_add_u32 v{xa[s].r0()}, s45, v{xa[s].r0()}")
        xa[s].finish()
    wa = [AddrReg(k, nwin) for _ in range(NW)]
    for c in range(NW):
        w_frag_addr(k, lane, wa[c].r0(), 256, False, c)
        if kv:
            k.e("s_lshl_b32 s45, s38, 14")
        else:
            k.e("s_lshl_b32 s45, s38, 7")
        k.e(f"v_{'add_u32' if kv else 'xor_b32'} v{wa[c].r0()}, s45, v{wa[c].r0()}")
        k.e(f"v_add_u32 v{wa[c].r0()}, 32768, v{wa[c].r0()}")
        wa[c].finish()
    acc = k.valloc(16 * NW * 2, 4)
    nfr = NW + 2
    ring = [k.valloc(4 * nfr, 4) for _ in range(2)]
    for i in range(16 * NW * 2):
        k.e(f"v_mov_b32 v{acc + i}, 0")

    def issue(step):
        b = (step % NS) * STG
        out = []
        for i in range(4): out += dma_l(xv[i], 8, 41, 43, b + i * 1024)
        for i in range(nw): out += dma_l(wvv[i], 12, 42, 44, b + i * 1024)
        out += ["s_add_u32 s41, s41, 128", "s_add_u32 s42, s42, 0x80000"]
        return out
    npst = 4 + nw
    NSTEP = 8
    for st in range(NS - 1):
        for x in issue(st): k.e(x)
    if kv:
        k.e("s_lshl_b32 s40, s2, 3"); k.e("s_add_u32 s40, s40, s3")
        ln_x_rows(k, lane, 40, 28, 32)

    def body(xfirst):
        for st in range(NSTEP):
            inflight = min(NS - 2, NSTEP - 1 - st)
            k.e(f"s_waitcnt vmcnt({inflight * npst})")
            k.e("s_barrier")
            ex = issue(st + NS - 1) if st + NS - 1 < NSTEP else []
            b = (st % NS) * STG
            subs = []
            for s in range(4):
                rd = []
                for c in range(NW):
                    for h2 in range(2):
                        r, o = wa[c].at(b + s * 4096 + h2 * 1024)
                        rd.append((f"ds_read_b64_tr_b16 {{d}}, {r} offset:{o}", 4 * c + 2 * h2, 2))
                for x in range(2):
                    r, o = xa[s].at(b + x * 4096)
                    rd.append((f"ds_read_b128 {{d}}, {r} offset:{o}", 4 * (NW + x), 4))
                mf = []
                for c in range(NW):
                    for x in range(2):
                        a, bb = (4 * (NW + x), 4 * c) if xfirst else (4 * c, 4 * (NW + x))
                        mf.append((acc + 16 * (2 * c + x), a, bb, None))
                subs.append(dict(reads=rd, mf=mf))
            run_substeps(k, subs, ring, 2, {0: ex})
        k.nops(12)

    def epilogue(isv):
        off = ring[0]; pk = ring[1]
        k.e(f"v_lshlrev_b32 v{off}, 4, v{lane}")
        k.e("s_lshl_b32 s46, s36, 19"); k.e("s_lshl_b32 s47, s37, 16"); k.e("s_add_u32 s46, s46, s47")
        k.e("s_lshl_b32 s47, s39, 14"); k.e("s_add_u32 s46, s46, s47")
        if not kv:
            k.e("s_lshl_b32 s47, s38, 12"); k.e("s_add_u32 s46, s46, s47")
            k.e(f"s_mov_b32 s48, 0x{f2u(SCALE_Q):x}")
        n = 0
        for c in range(NW):
            for x in range(2):
                a = acc + 16 * (2 * c + x)
                for j in range(2):
                    p = pk + 4 * (n % 4); n += 1
                    for i in range(4):
                        r0, r1 = a + 8 * j + 2 * i, a + 8 * j + 2 * i + 1
                        if not kv:
                            k.e(f"v_mul_f32 v{r0}, s48, v{r0}"); k.e(f"v_mul_f32 v{r1}, s48, v{r1}")
                        k.e(f"v_cvt_pk_bf16_f32 v{p + i}, v{r0}, v{r1}")
                    if isv: o = x * 8192 + j * 4096 + c * 1024
                    else: o = x * 8192 + (2 * c + j) * 1024
                    k.e(f"s_add_u32 s47, s46, {o}")
                    k.e(f"buffer_store_dwordx4 {vr(p, 4)}, v{off}, {sr(20, 4)}, s47 offen")
                    if n % 4 == 0: k.e("s_waitcnt vmcnt(0)") if False else k.e("s_nop 1")
    if kv:
        lv = k.newlabel("v")
        k.e("s_cmp_eq_u32 s38, 1"); k.e(f"s_cbranch_scc1 {lv}")
        body(False); epilogue(False)
        k.e(f"s_branch {end}")
        k.label(lv)
        body(True); epilogue(True)
    else:
        body(False); epilogue(False)
    k.label(end)
    return k
```

```python
from genlib import *
from gen_gemm import *

def pipeline(k, NS, NSTEP, npst, issue, subs_fn, ring, depth):
    for st in range(min(NS - 1, NSTEP)):
        for x in issue(st): k.e(x)
    for st in range(NSTEP):
        inflight = min(NS - 2, NSTEP - 1 - st)
        k.e(f"s_waitcnt vmcnt({inflight * npst})")
        k.e("s_barrier")
        ex = issue(st + NS - 1) if st + NS - 1 < NSTEP else []
        run_substeps(k, subs_fn(st), ring, depth, {0: ex})
    k.nops(12)

def oproj_kernel(name):
    STG, NS, NSTEP = 32768, 4, 16
    k = Kern(name, 512, STG * NS, 256)
    end = k.newlabel("end")
    k.e("s_cmp_ge_u32 s2, 256"); k.e(f"s_cbranch_scc1 {end}")
    lane, wv = lane_consts(k)
    k.srd(8, A_WS, 16 * MB, WS_CTX); k.srd(12, A_WO, 4 * MB); k.srd(20, A_WS, 16 * MB, WS_PART)
    k.srd_finish()
    k.e("s_and_b32 s36, s2, 7"); k.e("s_lshl_b32 s36, s36, 1"); k.e("s_bfe_u32 s37, s2, 0x10003"); k.e("s_add_u32 s36, s36, s37")
    k.e("s_bfe_u32 s37, s2, 0x20004"); k.e("s_lshr_b32 s40, s2, 6")
    k.e("s_lshr_b32 s38, s3, 2"); k.e("s_and_b32 s39, s3, 3")
    l16 = k.valloc(); k.e(f"v_lshlrev_b32 v{l16}, 4, v{lane}")
    xv = k.valloc()
    k.e("s_lshr_b32 s45, s3, 1"); k.e("s_lshl_b32 s45, s45, 18"); k.e("s_and_b32 s46, s3, 1"); k.e("s_lshl_b32 s46, s46, 11")
    k.e("s_add_u32 s45, s45, s46"); k.e(f"v_add_u32 v{xv}, s45, v{l16}")
    k.e("s_lshl_b32 s41, s36, 20"); k.e("s_lshl_b32 s45, s40, 16"); k.e("s_add_u32 s41, s41, s45")
    pc = k.valloc(); wvv = [k.valloc() for _ in range(2)]
    for i in range(2):
        k.e(f"v_lshl_add_u32 v{pc}, v{wv}, 1, {i}")
        w_dma_voff(k, lane, wvv[i], 256, 1024, pc)
    k.e("s_lshl_b32 s42, s40, 20"); k.e("s_lshl_b32 s45, s37, 8"); k.e("s_add_u32 s42, s42, s45")
    k.e("s_lshl_b32 s43, s3, 11"); k.e("s_add_u32 s44, s43, 16384")
    xa = AddrReg(k, 2); k.e("s_lshl_b32 s45, s39, 12"); k.e(f"v_add_u32 v{xa.r0()}, s45, v{l16}"); xa.finish()
    wa = [AddrReg(k, 2) for _ in range(2)]
    for c in range(2):
        w_frag_addr(k, lane, wa[c].r0(), 256, True, c)
        k.e("s_lshl_b32 s45, s38, 7"); k.e(f"v_xor_b32 v{wa[c].r0()}, s45, v{wa[c].r0()}")
        k.e(f"v_add_u32 v{wa[c].r0()}, 16384, v{wa[c].r0()}"); wa[c].finish()
    acc = k.valloc(32, 4); ring = [k.valloc(12, 4) for _ in range(3)]
    for i in range(32): k.e(f"v_mov_b32 v{acc + i}, 0")
    def issue(st):
        b = (st % NS) * STG
        out = [f"s_add_u32 m0, s43, 0x{b:x}", "s_nop 0"]
        out += [f"buffer_load_dwordx4 v{xv}, {sr(8, 4)}, s41 offen offset:{i * 1024} lds" for i in range(2)]
        for i in range(2): out += dma_l(wvv[i], 12, 42, 44, b + i * 1024)
        out += ["s_add_u32 s41, s41, 4096", "s_add_u32 s42, s42, 0x10000"]
        return out
    def subs(st):
        b = (st % NS) * STG; out = []
        for s in range(4):
            rd = []
            for c in range(2):
                for h2 in range(2):
                    r, o = wa[c].at(b + s * 4096 + h2 * 2048)
                    rd.append((f"ds_read_b64_tr_b16 {{d}}, {r} offset:{o}", 4 * c + 2 * h2, 2))
            r, o = xa.at(b + s * 1024)
            rd.append((f"ds_read_b128 {{d}}, {r} offset:{o}", 8, 4))
            out.append(dict(reads=rd, mf=[(acc + 16 * c, 4 * c, 8, None) for c in range(2)]))
        return out
    pipeline(k, NS, NSTEP, 4, issue, subs, ring, 3)
    off = ring[0]
    k.e(f"v_and_b32 v{off}, 31, v{lane}"); k.e(f"v_lshlrev_b32 v{off}, 11, v{off}")
    k.e(f"v_lshrrev_b32 v{pc}, 5, v{lane}"); k.e(f"v_lshl_add_u32 v{off}, v{pc}, 4, v{off}")
    k.e("s_lshl_b32 s45, s40, 22"); k.e("s_lshl_b32 s46, s36, 18"); k.e("s_add_u32 s45, s45, s46")
    k.e("s_lshl_b32 s46, s39, 16"); k.e("s_add_u32 s45, s45, s46")
    k.e("s_lshl_b32 s46, s37, 9"); k.e("s_add_u32 s45, s45, s46"); k.e("s_lshl_b32 s46, s38, 8"); k.e("s_add_u32 s45, s45, s46")
    for c in range(2):
        for q in range(4):
            k.e(f"buffer_store_dwordx4 {vr(acc + 16 * c + 4 * q, 4)}, v{off}, {sr(20, 4)}, s45 offen offset:{c * 128 + q * 32}")
    k.label(end)
    return k

def red_kernel(name):
    k = Kern(name, 256, 0, 512)
    end = k.newlabel("end")
    k.e("s_cmp_ge_u32 s2, 512"); k.e(f"s_cbranch_scc1 {end}")
    lane, wv = lane_consts(k)
    k.srd(8, A_WS, 16 * MB, WS_PART); k.srd(12, A_X, 2 * MB); k.srd(16, A_WS, 2 * MB, WS_H); k.srd(20, A_WS, 2 * MB, WS_HN)
    k.srd_finish()
    k.e("s_lshl_b32 s36, s2, 2"); k.e("s_add_u32 s36, s36, s3")
    o32 = k.valloc(); o16 = k.valloc()
    k.e(f"v_lshlrev_b32 v{o32}, 5, v{lane}"); k.e(f"v_lshlrev_b32 v{o16}, 4, v{lane}")
    p = k.valloc(32, 4); raw = k.valloc(4, 4); f = k.valloc(8, 4); t = k.valloc(3)
    k.e("s_lshl_b32 s37, s36, 11"); k.e("s_lshl_b32 s38, s36, 10")
    k.e(f"buffer_load_dwordx4 {vr(raw, 4)}, v{o16}, {sr(12, 4)}, s38 offen")
    for s in range(4):
        k.e(f"s_add_u32 s39, s37, {s * 4 * MB}")
        for i in range(2):
            k.e(f"buffer_load_dwordx4 {vr(p + 8 * s + 4 * i, 4)}, v{o32}, {sr(8, 4)}, s39 offen offset:{16 * i}")
    k.e("s_waitcnt vmcnt(0)")
    unpack8(k, f, raw)
    for i in range(8):
        k.e(f"v_add_f32 v{p + i}, v{p + i}, v{p + 8 + i}"); k.e(f"v_add_f32 v{p + 16 + i}, v{p + 16 + i}, v{p + 24 + i}")
        k.e(f"v_add_f32 v{p + i}, v{p + i}, v{p + 16 + i}")
    pack8(k, raw, p); unpack8(k, p, raw)
    for i in range(8): k.e(f"v_add_f32 v{f + i}, v{f + i}, v{p + i}")
    pack8(k, raw, f)
    k.e(f"buffer_store_dwordx4 {vr(raw, 4)}, v{o16}, {sr(16, 4)}, s38 offen")
    unpack8(k, f, raw)
    ln_row(k, None, f, t)
    pack8(k, p, f)
    k.e(f"buffer_store_dwordx4 {vr(p, 4)}, v{o16}, {sr(20, 4)}, s38 offen")
    k.label(end)
    return k

def mlp_kernel(name, which):
    g1 = which == 1
    STG, NS = 32768, 4
    NSTEP = 16 if g1 else 14
    nwg = 224 if g1 else 256
    k = Kern(name, 512, STG * NS, nwg)
    end = k.newlabel("end")
    k.e(f"s_cmp_ge_u32 s2, {nwg}"); k.e(f"s_cbranch_scc1 {end}")
    lane, wv = lane_consts(k)
    if g1:
        k.srd(8, A_WS, 2 * MB, WS_HN); k.srd(12, A_W1, 2048 * 3584); k.srd(16, A_B1, 3584); k.srd(20, A_WS, 2 * MB, WS_G)
    else:
        k.srd(8, A_WS, 2 * MB, WS_G); k.srd(12, A_W2, 1792 * 4096); k.srd(16, A_B2, 4096); k.srd(20, A_OUT, 2 * MB)
        k.srd(24, A_WS, 2 * MB, WS_H)
    k.srd_finish()
    k.e("s_and_b32 s36, s2, 7"); k.e("s_lshr_b32 s37, s2, 3")
    k.e("s_lshr_b32 s40, s3, 2"); k.e("s_bfe_u32 s38, s3, 0x10001"); k.e("s_and_b32 s39, s3, 1")
    wstride = 3584 if g1 else 4096
    l16 = k.valloc(); k.e(f"v_lshlrev_b32 v{l16}, 4, v{lane}")
    pc = k.valloc(); wvv = [k.valloc() for _ in range(2)]
    for i in range(2):
        k.e(f"v_lshl_add_u32 v{pc}, v{wv}, 1, {i}")
        w_dma_voff(k, lane, wvv[i], 128, wstride, pc)
    k.e("s_lshl_b32 s42, s37, 7")
    if g1:
        xvv = [k.valloc() for _ in range(2)]
        for i in range(2):
            k.e(f"v_lshl_add_u32 v{pc}, v{wv}, 1, {i}")
            w_dma_voff(k, lane, xvv[i], 128, 1024, pc)
        k.e("s_lshl_b32 s41, s36, 7")
    else:
        xv = k.valloc()
        k.e("s_lshr_b32 s45, s3, 2"); k.e(f"s_mul_i32 s45, s45, {112 * 1024}"); k.e("s_and_b32 s46, s3, 3"); k.e("s_lshl_b32 s46, s46, 11")
        k.e("s_add_u32 s45, s45, s46"); k.e(f"v_add_u32 v{xv}, s45, v{l16}")
        k.e(f"s_mul_i32 s41, s36, {2 * 112 * 1024}")
    k.e("s_lshl_b32 s43, s3, 11"); k.e("s_add_u32 s44, s43, 16384")
    wa = AddrReg(k, 2)
    w_frag_addr(k, lane, wa.r0(), 128, not g1, 0)
    k.e("s_lshl_b32 s45, s38, 6"); k.e(f"v_xor_b32 v{wa.r0()}, s45, v{wa.r0()}")
    k.e("s_lshl_b32 s45, s40, 13"); k.e("s_add_u32 s45, s45, 16384"); k.e(f"v_add_u32 v{wa.r0()}, s45, v{wa.r0()}"); wa.finish()
    xa = AddrReg(k, 2)
    if g1:
        w_frag_addr(k, lane, xa.r0(), 128, False, 0)
        k.e("s_lshl_b32 s45, s39, 6"); k.e(f"v_xor_b32 v{xa.r0()}, s45, v{xa.r0()}")
        k.e("s_lshl_b32 s45, s40, 13"); k.e(f"v_add_u32 v{xa.r0()}, s45, v{xa.r0()}")
    else:
        k.e("s_lshl_b32 s45, s39, 13"); k.e("s_lshl_b32 s46, s40, 12"); k.e("s_add_u32 s45, s45, s46")
        k.e(f"v_add_u32 v{xa.r0()}, s45, v{l16}")
    xa.finish()
    acc = k.valloc(16, 4); ring = [k.valloc(8, 4) for _ in range(4)]
    ep = k.valloc(24, 4)
    half = k.valloc(); l32 = k.valloc(); eo = k.valloc()
    k.e(f"v_lshrrev_b32 v{half}, 5, v{lane}"); k.e(f"v_and_b32 v{l32}, 31, v{lane}")
    if g1:
        k.e(f"v_lshlrev_b32 v{eo}, 3, v{half}")
        k.e("s_lshl_b32 s45, s37, 7"); k.e("s_lshl_b32 s46, s38, 6"); k.e("s_add_u32 s45, s45, s46")
        for q in range(4):
            k.e(f"buffer_load_dwordx2 {vr(ep + 2 * q, 2)}, v{eo}, {sr(16, 4)}, s45 offen offset:{16 * q}")
    else:
        k.e(f"v_lshlrev_b32 v{eo}, 1, v{l32}")
        k.e("s_lshl_b32 s45, s37, 7"); k.e("s_lshl_b32 s46, s38, 6"); k.e("s_add_u32 s45, s45, s46")
        k.e(f"buffer_load_ushort v{ep + 8}, v{eo}, {sr(16, 4)}, s45 offen")
        k.e(f"v_lshlrev_b32 v{eo}, 10, v{l32}"); k.e(f"v_lshl_add_u32 v{eo}, v{half}, 3, v{eo}")
        k.e("s_lshl_b32 s47, s37, 16"); k.e("s_lshl_b32 s46, s38, 15"); k.e("s_add_u32 s47, s47, s46")
        k.e("s_lshl_b32 s46, s36, 7"); k.e("s_add_u32 s47, s47, s46"); k.e("s_lshl_b32 s46, s39, 6"); k.e("s_add_u32 s47, s47, s46")
        for q in range(4):
            k.e(f"buffer_load_dwordx2 {vr(ep + 2 * q, 2)}, v{eo}, {sr(24, 4)}, s47 offen offset:{16 * q}")
    for i in range(16): k.e(f"v_mov_b32 v{acc + i}, 0")
    def issue(st):
        b = (st % NS) * STG; out = []
        if g1:
            for i in range(2): out += dma_l(xvv[i], 8, 41, 43, b + i * 1024)
        else:
            out += [f"s_add_u32 m0, s43, 0x{b:x}", "s_nop 0"]
            out += [f"buffer_load_dwordx4 v{xv}, {sr(8, 4)}, s41 offen offset:{i * 1024} lds" for i in range(2)]
        for i in range(2): out += dma_l(wvv[i], 12, 42, 44, b + i * 1024)
        out += [f"s_add_u32 s41, s41, {128 * 1024 if g1 else 8192}", f"s_add_u32 s42, s42, {128 * wstride}"]
        return out
    def subs(st):
        b = (st % NS) * STG; out = []
        for s in range(4):
            rd = []
            for h2 in range(2):
                r, o = wa.at(b + s * 2048 + h2 * (512 if g1 else 1024))
                rd.append((f"ds_read_b64_tr_b16 {{d}}, {r} offset:{o}", 2 * h2, 2))
            if g1:
                for h2 in range(2):
                    r, o = xa.at(b + s * 2048 + h2 * 512)
                    rd.append((f"ds_read_b64_tr_b16 {{d}}, {r} offset:{o}", 4 + 2 * h2, 2))
            else:
                r, o = xa.at(b + s * 1024)
                rd.append((f"ds_read_b128 {{d}}, {r} offset:{o}", 4, 4))
            out.append(dict(reads=rd, mf=[(acc, 0, 4, None) if g1 else (acc, 4, 0, None)]))
        return out
    pipeline(k, NS, NSTEP, 4, issue, subs, ring, 4)
    rb = ((NSTEP + 1) % NS) * STG
    ra = ring[0]
    k.e("s_and_b32 s45, s3, 3"); k.e("s_lshl_b32 s45, s45, 12"); k.e(f"s_add_u32 s45, s45, {rb}")
    k.e(f"v_add_u32 v{ra}, s45, v{l16}")
    k1 = k.newlabel("ks1"); k0 = k.newlabel("ks0")
    k.e("s_cmp_eq_u32 s40, 0"); k.e(f"s_cbranch_scc1 {k0}")
    for q in range(4): k.e(f"ds_write_b128 v{ra}, {vr(acc + 4 * q, 4)} offset:{q * 1024}")
    k.e("s_waitcnt lgkmcnt(0)"); k.e("s_barrier"); k.e(f"s_branch {end}")
    k.label(k0)
    k.e("s_barrier")
    rr = ring[1]
    for q in range(4): k.e(f"ds_read_b128 {vr(rr + 4 * q, 4)}, v{ra} offset:{q * 1024}")
    k.e("s_waitcnt lgkmcnt(0)")
    for i in range(16): k.e(f"v_add_f32 v{acc + i}, v{acc + i}, v{rr + i}")
    if g1:
        b = ep + 8
        unpack8(k, b, ep); unpack8(k, b + 8, ep + 4)
        c1 = -2.0 * 1.4426950408889634 * 0.7978845608028654
        k.e(f"s_mov_b32 s45, 0x{f2u(c1):x}"); k.e(f"s_mov_b32 s46, 0x{f2u(c1 * 0.044715):x}")
        for i in range(16):
            u = acc + i; t = rr + i
            k.e(f"v_add_f32 v{u}, v{u}, v{b + i}")
            k.e(f"v_mul_f32 v{t}, v{u}, v{u}")
            k.e(f"v_mov_b32 v{b + i}, s45")
            k.e(f"v_fmac_f32 v{b + i}, s46, v{t}")
            k.e(f"v_mul_f32 v{t}, v{u}, v{b + i}")
        for i in range(16): k.e(f"v_exp_f32 v{rr + i}, v{rr + i}")
        for i in range(16): k.e(f"v_add_f32 v{rr + i}, 1.0, v{rr + i}")
        for i in range(16): k.e(f"v_rcp_f32 v{rr + i}, v{rr + i}")
        for i in range(16): k.e(f"v_mul_f32 v{acc + i}, v{acc + i}, v{rr + i}")
        k.e("s_lshl_b32 s45, s36, 1"); k.e("s_add_u32 s45, s45, s39"); k.e("s_mul_i32 s45, s45, 112")
        k.e("s_lshl_b32 s46, s37, 2"); k.e("s_add_u32 s45, s45, s46"); k.e("s_lshl_b32 s46, s38, 1"); k.e("s_add_u32 s45, s45, s46")
        k.e("s_lshl_b32 s45, s45, 10")
        for j in range(2):
            pack8(k, rr + 4 * j, acc + 8 * j)
            k.e(f"buffer_store_dwordx4 {vr(rr + 4 * j, 4)}, v{l16}, {sr(20, 4)}, s45 offen offset:{1024 * j}")
    else:
        b = ep + 8
        k.e(f"v_lshlrev_b32 v{rr}, 16, v{b}")
        for i in range(16): k.e(f"v_add_f32 v{acc + i}, v{acc + i}, v{rr}")
        hh = ep + 8
        unpack8(k, hh, ep); unpack8(k, hh + 8, ep + 4)
        for i in range(16): k.e(f"v_add_f32 v{acc + i}, v{acc + i}, v{hh + i}")
        for q in range(4):
            for i in range(2):
                k.e(f"v_cvt_pk_bf16_f32 v{rr + 2 * q + i}, v{acc + 4 * q + 2 * i}, v{acc + 4 * q + 2 * i + 1}")
            k.e(f"buffer_store_dwordx2 {vr(rr + 2 * q, 2)}, v{eo}, {sr(20, 4)}, s47 offen offset:{16 * q}")
    k.label(end)
    return k
```

```python
NAME = "sequential_preLN__compressed_kv_cla__mixer_token_mlp__prompt"

A_X, A_CKV, A_WQ, A_WUK, A_WUV, A_WO, A_BX, A_W1, A_B1, A_W2, A_B2, A_OUT, A_DBG, A_WS = [8 * i for i in range(14)]

MB = 1 << 20
WS_XN = 0
WS_Q = 2 * MB
WS_K = 18 * MB
WS_V = 34 * MB
WS_CTX = 50 * MB
WS_PART = 66 * MB
WS_H = 82 * MB
WS_HN = 84 * MB
WS_G = 86 * MB
WS_SIZE = 268435456


def vr(b, n=1):
    return f"v{b}" if n == 1 else f"v[{b}:{b + n - 1}]"


def sr(b, n=1):
    return f"s{b}" if n == 1 else f"s[{b}:{b + n - 1}]"


class Kern:
    def __init__(self, name, nthreads, lds, grid):
        self.name, self.nthreads, self.lds, self.grid = name, nthreads, lds, grid
        self.L = []
        self.nv = 1
        self.maxv = 1
        self.lab = 0

    def e(self, s):
        self.L.append("    " + s)

    def label(self, s):
        self.L.append(s + ":")

    def newlabel(self, base):
        self.lab += 1
        return f".L{self.name[:6]}_{base}_{self.lab}"

    def valloc(self, n=1, align=1):
        if n >= 2 and align < 2:
            align = 2
        b = (self.nv + align - 1) // align * align
        self.nv = b + n
        self.maxv = max(self.maxv, self.nv)
        assert self.nv <= 256, f"{self.name}: out of VGPRs"
        return b

    def srd(self, dst, karg_off, nbytes, add=0):
        self.e(f"s_load_dwordx2 {sr(dst, 2)}, s[0:1], {karg_off}")
        self.pending_srd = getattr(self, "pending_srd", [])
        self.pending_srd.append((dst, nbytes, add))

    def srd_finish(self):
        self.e("s_waitcnt lgkmcnt(0)")
        for dst, nbytes, add in self.pending_srd:
            if add:
                self.e(f"s_add_u32 s{dst}, s{dst}, 0x{add:x}")
                self.e(f"s_addc_u32 s{dst + 1}, s{dst + 1}, 0")
            self.e(f"s_and_b32 s{dst + 1}, s{dst + 1}, 0xffff")
            self.e(f"s_mov_b32 s{dst + 2}, 0x{nbytes:x}")
            self.e(f"s_mov_b32 s{dst + 3}, 0x20000")
        self.pending_srd = []

    def nops(self, n):
        while n > 0:
            k = min(n, 16)
            self.e(f"s_nop {k - 1}")
            n -= k

    def text(self):
        nv = (self.maxv + 7) // 8 * 8
        hdr = [f".globl {self.name}", ".p2align 8", f".type {self.name},@function", f"{self.name}:"]
        return "\n".join(hdr + self.L + ["    s_endpgm"]) + "\n"

    def desc(self):
        nv = max(8, (self.maxv + 7) // 8 * 8)
        return "\n".join([
            ".p2align 6", f".amdhsa_kernel {self.name}",
            f"  .amdhsa_next_free_vgpr {nv}", "  .amdhsa_next_free_sgpr 80",
            f"  .amdhsa_accum_offset {nv}", "  .amdhsa_group_segment_fixed_size 0",
            "  .amdhsa_kernarg_size 112", "  .amdhsa_user_sgpr_count 2",
            "  .amdhsa_user_sgpr_kernarg_segment_ptr 1", "  .amdhsa_system_sgpr_workgroup_id_x 1",
            ".end_amdhsa_kernel"]) + "\n"

    def launch(self):
        return f"; @launch kernel={self.name} grid=({self.grid},1,1) block=({self.nthreads},1,1) lds={self.lds}"


class AddrReg:
    def __init__(self, k, nwin=1):
        self.k = k
        self.regs = [k.valloc() for _ in range(nwin)]

    def r0(self):
        return self.regs[0]

    def finish(self):
        for i in range(1, len(self.regs)):
            self.k.e(f"v_add_u32 v{self.regs[i]}, 0x{65536 * i:x}, v{self.regs[0]}")

    def at(self, off):
        w = off >> 16
        return f"v{self.regs[w]}", off & 0xFFFF


def wave_sum(k, v, t):
    for mod in ["quad_perm:[1,0,3,2]", "quad_perm:[2,3,0,1]", "row_half_mirror", "row_mirror"]:
        k.e("s_nop 1")
        k.e(f"v_add_f32_dpp v{v}, v{v}, v{v} {mod} row_mask:0xf bank_mask:0xf")
    for sw in ["v_permlane16_swap_b32", "v_permlane32_swap_b32"]:
        k.e(f"v_mov_b32 v{t}, v{v}")
        k.e("s_nop 1")
        k.e(f"{sw} v{v}, v{t}")
        k.e("s_nop 1")
        k.e(f"v_add_f32 v{v}, v{v}, v{t}")


def mfma(k, d, a, b, c=None):
    cs = vr(d, 16) if c is None else (c if isinstance(c, str) else vr(c, 16))
    k.e(f"v_mfma_f32_32x32x16_bf16 {vr(d, 16)}, {vr(a, 4)}, {vr(b, 4)}, {cs}")


def run_substeps(k, subs, ring, depth, extra=None):
    n = len(subs)
    issued = []

    def emit_reads(s):
        base = ring[s % depth]
        return [fmt.format(d=vr(base + off, nr)) for (fmt, off, nr) in subs[s]["reads"]]

    pre = min(depth - 1, n) if depth > 1 else 1
    for s in range(pre):
        for r in emit_reads(s):
            k.e(r)
    nissued = pre
    for s in range(n):
        later = sum(len(subs[t]["reads"]) for t in range(s + 1, nissued))
        k.e(f"s_waitcnt lgkmcnt({min(later, 15)})")
        nxt = emit_reads(nissued) if nissued < n else []
        if nissued < n:
            nissued += 1
        mf = subs[s]["mf"]
        base = ring[s % depth]
        ex = list(extra.get(s, [])) if extra else []
        per = -(-len(nxt) // max(1, len(mf) - 1)) if len(mf) > 1 else len(nxt)
        per = max(per, 2) if nxt else 0
        for i, (acc, ao, bo, ci) in enumerate(mf):
            if depth == 1 and i == 0:
                pass
            mfma(k, acc, base + ao, base + bo, ci)
            for r in nxt[:per]:
                k.e(r)
            nxt = nxt[per:]
            if ex:
                for x in ex[:2]:
                    k.e(x)
                ex = ex[2:]
        for r in nxt:
            k.e(r)
        for x in ex:
            k.e(x)
```

```python
import sys
from genlib import *
from gen_gemm import *
from gen_attn import *
from gen_rest import *

def build(upto=99):
    ks = [proj_kernel("kvproj_kernel", "kv"), proj_kernel("qproj_kernel", "q"), attn_kernel("attn_kernel"),
          oproj_kernel("oproj_kernel"), red_kernel("red_kernel"), mlp_kernel("mlpa_kernel", 1), mlp_kernel("mlpb_kernel", 2)]
    ks = ks[:upto]
    hdr = open("cdna_kernels/" + NAME + ".s.ref").read().split("; Override")[0]
    out = hdr + "\n".join(k.launch() for k in ks) + "\n"
    out += '.amdgcn_target "amdgcn-amd-amdhsa--gfx950"\n.text\n'
    for k in ks: out += k.text()
    out += '.section .rodata,"a"\n'
    for k in ks: out += k.desc()
    return out

if __name__ == "__main__":
    upto = int(sys.argv[2]) if len(sys.argv) > 2 else 99
    open(sys.argv[1], "w").write(build(upto))
```

```python
from genlib import *
from gen_gemm import *

def attn_kernel(name):
    k = Kern(name, 512, 163840, 256)
    end = k.newlabel("end")
    k.e("s_cmp_ge_u32 s2, 256"); k.e(f"s_cbranch_scc1 {end}")
    k.stamp(0)
    lane, wv = lane_consts(k)
    k.srd(8, A_WS, 2 * MB, WS_XN); k.srd(80, A_WQ, 4 * MB); k.srd(12, A_WS, 16 * MB, WS_K); k.srd(16, A_WS, 16 * MB, WS_V)
    k.srd(20, A_WS, 16 * MB, WS_CTX)
    k.srd(24, A_WO, 4 * MB); k.srd(28, A_W1, 2048 * 3584); k.srd(32, A_W2, 1792 * 4096)
    k.srd_finish()
    pfv, pfd = prefetch_setup(k, 512, 1)
    k.e("s_and_b32 s36, s2, 7"); k.e("s_lshl_b32 s36, s36, 2"); k.e("s_bfe_u32 s37, s2, 0x20003")
    k.e("s_add_u32 s36, s36, s37")
    k.e("s_lshr_b32 s37, s2, 5")
    k.e("s_lshr_b32 s38, s3, 2")
    k.e("s_and_b32 s39, s3, 3")
    l16 = k.valloc()
    dmv = k.valloc()
    vK = k.valloc(); vV = k.valloc()
    k.e(f"v_lshlrev_b32 v{l16}, 4, v{lane}")
    k.e("s_lshl_b32 s48, s39, 12"); k.e(f"v_add_u32 v{dmv}, s48, v{l16}")
    thr = k.valloc()
    t0 = k.valloc(); t1 = k.valloc(); t2 = k.valloc(); t3 = k.valloc()
    k.e(f"v_and_b32 v{thr}, 31, v{lane}"); k.e("s_lshl_b32 s48, s39, 5"); k.e(f"v_add_u32 v{thr}, s48, v{thr}")
    k.e("s_lshl_b32 s48, s38, 6"); k.e(f"v_subrev_u32 v{thr}, s48, v{thr}")
    k.e(f"v_lshrrev_b32 v{t0}, 5, v{lane}"); k.e(f"v_lshlrev_b32 v{t0}, 2, v{t0}"); k.e(f"v_sub_u32 v{thr}, v{thr}, v{t0}")
    ninf = k.valloc(); k.e(f"v_mov_b32 v{ninf}, 0xff800000")
    Q = k.valloc(32, 4); O = k.valloc(64, 4); S = k.valloc(32, 4); NM = k.valloc(16, 4); P = k.valloc(16, 4)
    FR = k.valloc(32, 4)
    ls = k.valloc(4, 2); mx = k.valloc(2, 2)
    k.e("s_cmp_lt_u32 s39, 2"); k.e("s_cselect_b32 s49, s38, 0")
    k.e("s_mul_i32 s50, s38, 0xc000")
    k.e("s_cmp_eq_u32 s38, 0")
    k.e("s_mov_b32 s88, 0x4000"); k.e("s_cselect_b32 s88, s88, 0x1c000")
    k.e("s_mov_b32 s89, 0x10000"); k.e("s_cselect_b32 s89, s89, 0x8000")
    k.e("s_lshl_b32 s51, s36, 19"); k.e("s_lshl_b32 s48, s38, 14"); k.e("s_add_u32 s51, s51, s48")

    def astamp(a, b):
        if not Kern.STAMPS: return
        k.stamp(13)
        k.e("s_cmp_eq_u32 s52, 0")
        k.e(f"s_cselect_b32 s{64 + 2 * a}, s90, s{64 + 2 * a}"); k.e(f"s_cselect_b32 s{64 + 2 * b}, s{64 + 2 * b}, s90")

    def dma_tile(srd, soff, m0reg):
        k.e(f"s_mov_b32 m0, s{m0reg}"); k.e("s_nop 0")
        for i in range(4):
            k.e(f"buffer_load_dwordx4 v{dmv}, {sr(srd, 4)}, s{soff} offen offset:{i * 1024} lds")

    def seq_pv():
        return [("v", (kc * 4 + db) * 1024, O + 16 * db, "A", P + 4 * kc, None) for kc in range(4) for db in range(4)]
    def seq_qk():
        out = []
        for ds in range(8):
            for kb in range(2):
                out.append(("k", (kb * 8 + ds) * 1024, S + 16 * kb, "A", Q + 4 * ds, NM if ds == 0 else None))
        return out
    PRE = 7
    def rd(seq, i):
        t, off = seq[i][0], seq[i][1]
        k.e(f"ds_read_b128 {vr(FR + 4 * (i % 8), 4)}, v{vK if t == 'k' else vV} offset:{off}")
    def preread(seq):
        for i in range(PRE): rd(seq, i)
    def mphase(seq):
        n = len(seq)
        for i in range(n):
            later = min(n - 1, i + PRE - 1) - i
            k.e(f"s_waitcnt lgkmcnt({later})")
            _, _, acc, _, b, ci = seq[i]
            mfma(k, acc, FR + 4 * (i % 8), b, ci)
            if i + PRE < n: rd(seq, i + PRE)
        k.e("s_waitcnt vmcnt(0)")
        k.nops(10)
        k.e("s_barrier")

    def softmax(slow, back):
        k.e(f"v_max3_f32 v{mx}, v{S}, v{S + 1}, v{S + 2}")
        k.e(f"v_max3_f32 v{mx + 1}, v{S + 16}, v{S + 17}, v{S + 18}")
        for i in range(3, 15, 2):
            k.e(f"v_max3_f32 v{mx}, v{mx}, v{S + i}, v{S + i + 1}")
            k.e(f"v_max3_f32 v{mx + 1}, v{mx + 1}, v{S + 16 + i}, v{S + 16 + i + 1}")
        k.e(f"v_max3_f32 v{mx}, v{mx}, v{S + 15}, v{S + 31}")
        k.e(f"v_max_f32 v{mx}, v{mx}, v{mx + 1}")
        k.e(f"v_cmp_lt_f32 vcc, 0x41000000, v{mx}")
        k.e("s_cmp_lg_u32 s47, 0"); k.e(f"s_cbranch_scc1 {slow}")
        k.e(f"s_cbranch_vccnz {slow}")
        k.label(back)
        for i in range(17):
            if i < 16:
                k.e(f"v_exp_f32 v{S + 2 * i}, v{S + 2 * i}"); k.e(f"v_exp_f32 v{S + 2 * i + 1}, v{S + 2 * i + 1}")
            if i > 0:
                a = S + 2 * (i - 1)
                if i == 16: k.e("s_nop 0")
                k.e(f"v_pk_add_f32 {vr(ls + 2 * (i % 2), 2)}, {vr(ls + 2 * (i % 2), 2)}, {vr(a, 2)}")
                k.e(f"v_cvt_pk_bf16_f32 v{P + i - 1}, v{a}, v{a + 1}")

    def slowpath(slow, back):
        k.label(slow)
        k.e(f"v_mov_b32 v{t0}, v{mx}"); k.e("s_nop 1")
        k.e(f"v_permlane32_swap_b32 v{mx}, v{t0}"); k.e("s_nop 1")
        k.e(f"v_max_f32 v{mx}, v{mx}, v{t0}")
        nf = k.newlabel("nf"); dn = k.newlabel("dn")
        k.e("s_cmp_lg_u32 s47, 0"); k.e(f"s_cbranch_scc1 {dn}")
        k.e(f"v_max_f32 v{mx}, 0, v{mx}")
        k.e(f"v_sub_f32 v{t0}, 0, v{mx}"); k.e(f"v_exp_f32 v{t0}, v{t0}"); k.e("s_nop 0")
        for i in range(64): k.e(f"v_mul_f32 v{O + i}, v{O + i}, v{t0}")
        for i in range(4): k.e(f"v_mul_f32 v{ls + i}, v{ls + i}, v{t0}")
        k.label(dn)
        k.e("s_mov_b32 s47, 0")
        for i in range(32): k.e(f"v_sub_f32 v{S + i}, v{S + i}, v{mx}")
        for i in range(16): k.e(f"v_sub_f32 v{NM + i}, v{NM + i}, v{mx}")
        k.e(f"s_branch {back}")

    def toggles():
        k.e(f"v_xor_b32 v{vK}, s88, v{vK}"); k.e(f"v_xor_b32 v{vV}, s89, v{vV}")

    def vphase_dma():
        sk = k.newlabel("sk"); sv = k.newlabel("sv")
        k.e("s_add_u32 s48, s41, 2"); k.e("s_cmp_gt_u32 s48, s42"); k.e(f"s_cbranch_scc1 {sk}")
        dma_tile(12, 43, 45)
        k.label(sk)
        dma_tile(16, 44, 46)
        k.e("s_add_u32 s43, s43, 0x8000"); k.e("s_add_u32 s44, s44, 0x8000")
        k.e("s_xor_b32 s45, s45, s88"); k.e("s_xor_b32 s46, s46, s89")

    slow1, back1, slow2, back2 = [k.newlabel(x) for x in ("slow", "back", "slow", "back")]
    blk = k.newlabel("blk"); loop = k.newlabel("loop"); last = k.newlabel("last")
    save = k.nv; k.nv = S
    xv = [k.valloc() for _ in range(4)]; pc = k.valloc()
    for i in range(4):
        k.e(f"v_mov_b32 v{pc}, {i}")
        x_dma_voff(k, lane, xv[i], pc)
    wvv = [k.valloc() for _ in range(2)]
    for i in range(2):
        k.e(f"v_lshl_add_u32 v{pc}, v{wv}, 1, {i}")
        w_dma_voff(k, lane, wvv[i], 256, 8192, pc)
    k.e("s_sub_u32 s42, 15, s37"); k.e("s_cmp_eq_u32 s38, 0"); k.e("s_cselect_b32 s84, s42, s37")
    k.e("s_lshl_b32 s84, s84, 2"); k.e("s_add_u32 s84, s84, s39"); k.e("s_lshl_b32 s84, s84, 15")
    k.e("s_lshl_b32 s85, s36, 8")
    k.e("s_lshl_b32 s86, s3, 12"); k.e("s_lshl_b32 s87, s3, 11"); k.e("s_add_u32 s87, s87, 32768")
    QSTG = 49152
    xa = [AddrReg(k, 3) for _ in range(4)]
    for q in range(4):
        x_frag_addr(k, lane, xa[q].r0(), q)
        k.e(f"v_add_u32 v{xa[q].r0()}, s86, v{xa[q].r0()}")
        xa[q].finish()
    wa = [AddrReg(k, 3) for _ in range(4)]
    for c in range(4):
        w_frag_addr(k, lane, wa[c].r0(), 256, False, c)
        k.e(f"v_add_u32 v{wa[c].r0()}, 32768, v{wa[c].r0()}")
        wa[c].finish()
    assert k.nv <= S + 32 + 3, k.nv - S
    k.nv = save
    for i in range(64): k.e(f"v_mov_b32 v{O + i}, 0")
    def qissue(st):
        b = (st % 3) * QSTG; out = []
        for i in range(4): out += dma_l(xv[i], 8, 84, 86, b + i * 1024)
        for i in range(2): out += dma_l(wvv[i], 80, 85, 87, b + i * 1024)
        out += ["s_add_u32 s84, s84, 128", "s_add_u32 s85, s85, 0x80000"]
        return out
    def qsubs(st):
        b = (st % 3) * QSTG; subs = []
        for q in range(4):
            rd = []
            for c in range(4):
                for h2 in range(2):
                    r, o = wa[c].at(b + q * 4096 + h2 * 1024)
                    rd.append((f"ds_read_b64_tr_b16 {{d}}, {r} offset:{o}", 4 * c + 2 * h2, 2))
            r, o = xa[q].at(b)
            rd.append((f"ds_read_b128 {{d}}, {r} offset:{o}", 16, 4))
            subs.append(dict(reads=rd, mf=[(O + 16 * c, 4 * c, 16, None) for c in range(4)]))
        return subs
    assert FR == P + 16
    def qpost():
        self_prefetch_rows(k, t1, t2); prefetch(k, t1, pfd, 8)
        self_prefetch_w(k, t3, t2); prefetch(k, t3, pfd, 80)
    pipeline3(k, 3, 8, 6, qissue, qsubs, [P, P + 20], 2)
    k.e(f"s_mov_b32 s48, 0x{f2u(SCALE_Q):x}")
    for i in range(64): k.e(f"v_mul_f32 v{O + i}, s48, v{O + i}")
    for i in range(32): k.e(f"v_cvt_pk_bf16_f32 v{Q + i}, v{O + 2 * i}, v{O + 2 * i + 1}")
    k.e("s_lshl_b32 s48, s3, 13"); k.e("s_add_u32 s48, s48, 0x18000")
    k.e(f"v_add_u32 v{t0}, s48, v{l16}")
    for ds in range(8): k.e(f"ds_write_b128 v{t0}, {vr(Q + 4 * ds, 4)} offset:{ds * 1024}")
    k.e("s_mov_b32 s52, 0")
    k.label(blk)
    k.e("s_lshl_b32 s48, s39, 12")
    k.e("s_add_u32 s45, s50, s48")
    k.e("s_add_u32 s46, s45, 0x8000")
    k.e("s_mov_b32 s43, s51"); k.e("s_mov_b32 s44, s51")
    def kvpro():
        dma_tile(12, 43, 45); dma_tile(16, 44, 46)
        k.e("s_add_u32 s43, s43, 0x8000"); k.e("s_add_u32 s44, s44, 0x8000")
        k.e("s_xor_b32 s45, s45, s88"); k.e("s_xor_b32 s46, s46, s89")
        nk1 = k.newlabel("nk1")
        k.e("s_cmp_eq_u32 s42, 0"); k.e(f"s_cbranch_scc1 {nk1}")
        dma_tile(12, 43, 45)
        k.label(nk1)
        k.e("s_add_u32 s43, s43, 0x8000"); k.e("s_xor_b32 s45, s45, s88")
    b2 = k.newlabel("b2"); pj = k.newlabel("pj"); g1p = k.newlabel("g1p")
    k.e("s_cmp_lg_u32 s52, 0"); k.e(f"s_cbranch_scc1 {b2}")
    k.e("s_cmp_lg_u32 s38, 0"); k.e(f"s_cbranch_scc1 {g1p}")
    kvpro()
    k.e("s_waitcnt lgkmcnt(0)"); k.e("s_barrier")
    k.e(f"s_branch {pj}")
    k.label(g1p)
    k.e("s_waitcnt lgkmcnt(0)"); k.e("s_barrier")
    kvpro()
    k.e("s_lshl_b32 s48, s39, 13"); k.e("s_add_u32 s48, s48, 0x18000"); k.e(f"v_add_u32 v{t0}, s48, v{l16}")
    for ds in range(8): k.e(f"ds_read_b128 {vr(Q + 4 * ds, 4)}, v{t0} offset:{ds * 1024}")
    k.e(f"s_branch {pj}")
    k.label(b2)
    kvpro()
    k.e("s_lshl_b32 s48, s39, 13"); k.e("s_add_u32 s48, s48, 0x20000"); k.e(f"v_add_u32 v{t0}, s48, v{l16}")
    for ds in range(8): k.e(f"ds_read_b128 {vr(Q + 4 * ds, 4)}, v{t0} offset:{ds * 1024}")
    for x in (24, 28, 32): prefetch(k, pfv, pfd, x)
    k.label(pj)
    k.e(f"v_add_u32 v{vK}, s50, v{l16}"); k.e(f"v_add_u32 v{vV}, 0x8000, v{vK}"); k.e(f"v_xor_b32 v{vV}, s89, v{vV}")
    for i in range(64): k.e(f"v_mov_b32 v{O + i}, 0")
    for i in range(16): k.e(f"v_mov_b32 v{NM + i}, 0")
    for i in range(4): k.e(f"v_mov_b32 v{ls + i}, 0")
    k.e("s_mov_b32 s47, 1"); k.e("s_mov_b32 s41, 0")
    npf = k.newlabel("npf"); pfd2 = k.newlabel("pfd")
    k.e("s_cmp_eq_u32 s52, 0"); k.e(f"s_cbranch_scc1 {npf}")
    k.e("s_waitcnt vmcnt(3) lgkmcnt(0)"); k.e(f"s_branch {pfd2}")
    k.label(npf)
    k.e("s_waitcnt vmcnt(0) lgkmcnt(0)")
    k.label(pfd2)
    k.e("s_barrier")
    astamp(1, 4)
    g0a = k.newlabel("g0a")
    k.e("s_cmp_eq_u32 s38, 0"); k.e(f"s_cbranch_scc1 {g0a}"); k.e("s_barrier"); k.label(g0a)
    preread(seq_qk()); mphase(seq_qk())
    k.e("s_cmp_eq_u32 s42, 0"); k.e(f"s_cbranch_scc1 {last}")
    k.label(loop)
    vphase_dma()
    softmax(slow1, back1)
    toggles()
    sq = seq_pv() + seq_qk()
    preread(sq)
    k.e("s_barrier")
    mphase(sq)
    k.e("s_add_u32 s41, s41, 1"); k.e("s_cmp_lt_u32 s41, s42"); k.e(f"s_cbranch_scc1 {loop}")
    k.label(last)
    skipl = k.newlabel("skipl"); skip2 = k.newlabel("skip2")
    k.e("s_cmp_lg_u32 s49, 0"); k.e(f"s_cbranch_scc1 {skipl}")
    for r0 in range(0, 32, 4):
        for e4 in range(4):
            r = r0 + e4; c = 32 * (r // 16) + 8 * ((r % 16) // 4) + (r % 4)
            k.e(f"v_cmp_lt_i32 {sr(54 + 2 * e4, 2)}, v{thr}, {c}")
        k.e("s_nop 1")
        for e4 in range(4):
            k.e(f"v_cndmask_b32 v{S + r0 + e4}, v{S + r0 + e4}, v{ninf}, {sr(54 + 2 * e4, 2)}")
    softmax(slow2, back2)
    toggles()
    preread(seq_pv())
    k.e("s_barrier")
    mphase(seq_pv())
    k.e(f"s_branch {skip2}")
    k.label(skipl)
    k.e("s_barrier"); k.e("s_barrier")
    k.label(skip2)
    g1a = k.newlabel("g1a")
    k.e("s_cmp_eq_u32 s38, 1"); k.e(f"s_cbranch_scc1 {g1a}"); k.e("s_barrier"); k.label(g1a)
    astamp(2, 5)
    k.e(f"v_add_f32 v{ls}, v{ls}, v{ls + 1}"); k.e(f"v_add_f32 v{ls + 2}, v{ls + 2}, v{ls + 3}")
    k.e(f"v_add_f32 v{ls}, v{ls}, v{ls + 2}"); k.e(f"v_mov_b32 v{t0}, v{ls}"); k.e("s_nop 1")
    k.e(f"v_permlane32_swap_b32 v{ls}, v{t0}"); k.e("s_nop 1")
    k.e(f"v_add_f32 v{mx + 1}, v{ls}, v{t0}")
    k.e(f"v_sub_f32 v{mx}, 0, v{NM}")
    k.e(f"v_mov_b32 v{t0}, 0xf149f2ca")
    k.e("s_cmp_lg_u32 s47, 0"); k.e("s_cselect_b64 vcc, -1, 0")
    k.e(f"v_cndmask_b32 v{mx}, v{mx}, v{t0}, vcc")
    k.e("s_lshl_b32 s48, s3, 13")
    k.e(f"v_add_u32 v{t1}, s48, v{l16}")
    k.e("s_xor_b32 s53, s3, 4"); k.e("s_lshl_b32 s53, s53, 13"); k.e(f"v_add_u32 v{t2}, s53, v{l16}")
    k.e("s_lshl_b32 s48, s3, 9"); k.e("s_add_u32 s48, s48, 0x10000")
    k.e(f"v_lshlrev_b32 v{t3}, 3, v{lane}"); k.e(f"v_add_u32 v{t0}, s48, v{t3}")
    k.e(f"ds_write_b64 v{t0}, {vr(mx, 2)}")
    k.e("s_xor_b32 s48, s48, 0x800"); k.e(f"v_add_u32 v{t3}, s48, v{t3}")
    mg1 = k.newlabel("mg1"); mgd = k.newlabel("mgd")
    k.e("s_cmp_eq_u32 s38, 1"); k.e(f"s_cbranch_scc1 {mg1}")
    def merge(g):
        keep = O + 32 * g; send = O + 32 * (1 - g)
        for i in range(8): k.e(f"ds_write_b128 v{t1}, {vr(send + 4 * i, 4)} offset:{i * 1024}")
        k.e("s_waitcnt lgkmcnt(0)"); k.e("s_barrier")
        k.e(f"ds_read_b64 {vr(ls, 2)}, v{t3}")
        for i in range(8): k.e(f"ds_read_b128 {vr(S + 4 * i, 4)}, v{t2} offset:{i * 1024}")
        k.e("s_waitcnt lgkmcnt(8)")
        k.e(f"v_max_f32 v{t0}, v{mx}, v{ls}")
        k.e(f"v_sub_f32 v{mx}, v{mx}, v{t0}"); k.e(f"v_sub_f32 v{ls}, v{ls}, v{t0}")
        k.e(f"v_exp_f32 v{mx}, v{mx}"); k.e(f"v_exp_f32 v{ls}, v{ls}"); k.e("s_nop 0")
        k.e(f"v_mul_f32 v{t0}, v{mx}, v{mx + 1}"); k.e(f"v_fmac_f32 v{t0}, v{ls}, v{ls + 1}")
        k.e(f"v_rcp_f32 v{t0}, v{t0}"); k.e("s_nop 0")
        k.e(f"v_mul_f32 v{mx}, v{mx}, v{t0}"); k.e(f"v_mul_f32 v{ls}, v{ls}, v{t0}")
        k.e("s_waitcnt lgkmcnt(0)")
        for i in range(32):
            k.e(f"v_mul_f32 v{keep + i}, v{keep + i}, v{mx}")
            k.e(f"v_fmac_f32 v{keep + i}, v{S + i}, v{ls}")
        k.e("s_lshl_b32 s48, s42, 2"); k.e("s_add_u32 s48, s48, s39"); k.e("s_lshl_b32 s48, s48, 18")
        k.e("s_lshl_b32 s53, s36, 13"); k.e("s_add_u32 s48, s48, s53")
        for f in range(4):
            for i in range(4):
                k.e(f"v_cvt_pk_bf16_f32 v{P + 4 * f + i}, v{keep + 8 * f + 2 * i}, v{keep + 8 * f + 2 * i + 1}")
            k.e(f"s_add_u32 s53, s48, {(4 * g + f) * 1024}")
            k.e(f"buffer_store_dwordx4 {vr(P + 4 * f, 4)}, v{l16}, {sr(20, 4)}, s53 offen")
    merge(0); k.e(f"s_branch {mgd}"); k.label(mg1); merge(1); k.label(mgd)
    k.e("s_barrier")
    astamp(3, 13)
    k.e("s_add_u32 s52, s52, 1"); k.e("s_mov_b32 s42, s37")
    k.e("s_cmp_lt_u32 s52, 2"); k.e(f"s_cbranch_scc1 {blk}")
    k.stamp_flush(2)
    k.e(f"s_branch {end}")
    slowpath(slow1, back1); slowpath(slow2, back2)
    k.label(end)
    return k
```

```python
from genlib import *
import os

SCALE_Q = 1.4426950408889634 / (128.0 ** 0.5)
import struct
def f2u(x): return struct.unpack("<I", struct.pack("<f", x))[0]

def lane_consts(k):
    lane = k.valloc()
    k.e(f"v_and_b32 v{lane}, 63, v0")
    t = k.valloc()
    k.e(f"v_lshrrev_b32 v{t}, 6, v0")
    k.e("s_nop 0")
    k.e(f"v_readfirstlane_b32 s3, v{t}")
    return lane, t

def w_frag_addr(k, lane, dst, rowbytes, perm, cb):
    t = k.valloc(); u = k.valloc()
    k.e(f"v_bfe_u32 v{t}, v{lane}, 2, 2")
    k.e(f"v_lshrrev_b32 v{u}, 5, v{lane}")
    k.e(f"v_lshlrev_b32 v{u}, {2 if perm else 3}, v{u}")
    k.e(f"v_add_u32 v{u}, v{u}, v{t}")
    k.e(f"v_mul_u32_u24 v{dst}, {rowbytes}, v{u}")
    if rowbytes >= 256:
        k.e(f"v_xor_b32 v{t}, {cb & 3}, v{t}")
        if cb >> 2:
            k.e(f"v_add_u32 v{t}, {(cb >> 2) << 2}, v{t}")
    else:
        k.e(f"v_lshrrev_b32 v{t}, 1, v{t}")
        k.e(f"v_xor_b32 v{t}, {cb}, v{t}")
    k.e(f"v_lshlrev_b32 v{t}, 6, v{t}")
    k.e(f"v_add_u32 v{dst}, v{dst}, v{t}")
    k.e(f"v_bfe_u32 v{t}, v{lane}, 4, 1")
    k.e(f"v_lshlrev_b32 v{t}, 5, v{t}")
    k.e(f"v_add_u32 v{dst}, v{dst}, v{t}")
    k.e(f"v_and_b32 v{t}, 3, v{lane}")
    k.e(f"v_lshlrev_b32 v{t}, 3, v{t}")
    k.e(f"v_add_u32 v{dst}, v{dst}, v{t}")
    k.nv = t

def w_dma_voff(k, lane, dst, rowbytes, gstride, piece_expr_reg):
    lpr = rowbytes // 16
    rpp = 1024 // rowbytes
    t = k.valloc(); u = k.valloc()
    sh = lpr.bit_length() - 1
    k.e(f"v_lshrrev_b32 v{t}, {sh}, v{lane}")
    k.e(f"v_and_b32 v{u}, {lpr - 1}, v{lane}")
    x = k.valloc()
    k.e(f"v_mul_u32_u24 v{x}, {rpp}, v{piece_expr_reg}")
    k.e(f"v_add_u32 v{t}, v{t}, v{x}")
    if rowbytes >= 256:
        k.e(f"v_and_b32 v{x}, 3, v{t}")
    else:
        k.e(f"v_bfe_u32 v{x}, v{t}, 1, 1")
    k.e(f"v_lshlrev_b32 v{x}, 2, v{x}")
    k.e(f"v_xor_b32 v{u}, v{u}, v{x}")
    k.e(f"v_lshlrev_b32 v{u}, 4, v{u}")
    k.e(f"s_mov_b32 s60, {gstride}")
    k.e(f"v_mul_lo_u32 v{dst}, s60, v{t}")
    k.e(f"v_add_u32 v{dst}, v{dst}, v{u}")
    k.nv = t

def x_dma_voff(k, lane, dst, piece_reg):
    t = k.valloc(); u = k.valloc(); x = k.valloc()
    k.e(f"v_lshrrev_b32 v{t}, 3, v{lane}")
    k.e(f"v_lshl_add_u32 v{t}, v{piece_reg}, 3, v{t}")
    k.e(f"v_and_b32 v{u}, 7, v{lane}")
    k.e(f"v_bfe_u32 v{x}, v{t}, 1, 3")
    k.e(f"v_xor_b32 v{u}, v{u}, v{x}")
    k.e(f"v_lshlrev_b32 v{u}, 4, v{u}")
    k.e(f"v_lshl_add_u32 v{dst}, v{t}, 10, v{u}")
    k.nv = t

def x_frag_addr(k, lane, dst, s):
    t = k.valloc(); u = k.valloc(); x = k.valloc()
    k.e(f"v_and_b32 v{t}, 31, v{lane}")
    k.e(f"v_lshrrev_b32 v{u}, 5, v{lane}")
    k.e(f"v_add_u32 v{u}, {2 * s}, v{u}")
    k.e(f"v_bfe_u32 v{x}, v{t}, 1, 3")
    k.e(f"v_xor_b32 v{u}, v{u}, v{x}")
    k.e(f"v_lshlrev_b32 v{u}, 4, v{u}")
    k.e(f"v_lshl_add_u32 v{dst}, v{t}, 7, v{u}")
    k.nv = t

def dma(k, voff, srd, soff, m0s, m0c):
    k.e(f"s_add_u32 m0, s{m0s}, 0x{m0c:x}")
    k.e("s_nop 0")
    k.e(f"buffer_load_dwordx4 v{voff}, {sr(srd, 4)}, s{soff} offen lds")

def dma_l(voff, srd, soff, m0s, m0c):
    return [f"s_add_u32 m0, s{m0s}, 0x{m0c:x}", "s_nop 0",
            f"buffer_load_dwordx4 v{voff}, {sr(srd, 4)}, s{soff} offen lds"]

def ln_row(k, d, xin, t):
    s, q, tmp = t, t + 1, t + 2
    k.e(f"v_add_f32 v{s}, v{xin}, v{xin + 1}")
    for i in range(2, 8):
        k.e(f"v_add_f32 v{s}, v{s}, v{xin + i}")
    wave_sum(k, s, tmp)
    k.e(f"v_mul_f32 v{s}, 0x{f2u(1.0 / 512):x}, v{s}")
    for i in range(8):
        k.e(f"v_sub_f32 v{xin + i}, v{xin + i}, v{s}")
    k.e(f"v_mul_f32 v{q}, v{xin}, v{xin}")
    for i in range(1, 8):
        k.e(f"v_fmac_f32 v{q}, v{xin + i}, v{xin + i}")
    wave_sum(k, q, tmp)
    k.e(f"v_mov_b32 v{tmp}, 0x{f2u(1e-5):x}")
    k.e(f"v_fmac_f32 v{tmp}, 0x{f2u(1.0 / 512):x}, v{q}")
    k.e(f"v_rsq_f32 v{tmp}, v{tmp}")
    k.e("s_nop 0")
    for i in range(8):
        k.e(f"v_mul_f32 v{xin + i}, v{xin + i}, v{tmp}")

def unpack8(k, dst, src):
    for i in range(4):
        k.e(f"v_lshlrev_b32 v{dst + 2 * i}, 16, v{src + i}")
        k.e(f"v_and_b32 v{dst + 2 * i + 1}, 0xffff0000, v{src + i}")

def pack8(k, dst, src):
    for i in range(4):
        k.e(f"v_cvt_pk_bf16_f32 v{dst + i}, v{src + 2 * i}, v{src + 2 * i + 1}")

def ln_x_rows(k, lane, row_sgpr, srd_x, srd_xn):
    save = k.nv
    off = k.valloc(); raw = k.valloc(4, 4); f = k.valloc(8, 4); t = k.valloc(3)
    k.e(f"s_lshl_b32 s61, s{row_sgpr}, 10")
    k.e(f"v_lshlrev_b32 v{off}, 4, v{lane}")
    k.e(f"buffer_load_dwordx4 {vr(raw, 4)}, v{off}, {sr(srd_x, 4)}, s61 offen")
    k.e("s_waitcnt vmcnt(0)")
    unpack8(k, f, raw)
    ln_row(k, None, f, t)
    pack8(k, raw, f)
    k.e(f"buffer_store_dwordx4 {vr(raw, 4)}, v{off}, {sr(srd_xn, 4)}, s61 offen")
    k.nv = save

def kv_kernel(name, st_flags=""):
    STG, NS = 49152, 3
    k = Kern(name, 512, STG * NS, 256)
    k.e("s_cmp_ge_u32 s2, 256"); end = k.newlabel("end"); k.e(f"s_cbranch_scc1 {end}")
    k.stamp(0)
    lane, wv = lane_consts(k)
    k.srd(8, A_CKV, 2 * MB); k.srd(12, A_WUK, 4 * MB); k.srd(16, A_WUV, 4 * MB)
    k.srd(20, A_WS, 16 * MB, WS_K); k.srd(24, A_WS, 16 * MB, WS_V)
    k.srd(28, A_X, 2 * MB); k.srd(32, A_WS, 2 * MB, WS_XN); k.srd(48, A_WQ, 4 * MB)
    k.e("s_and_b32 s36, s2, 7"); k.e("s_lshl_b32 s36, s36, 2"); k.e("s_bfe_u32 s37, s2, 0x20003")
    k.e("s_add_u32 s36, s36, s37")
    k.e("s_lshr_b32 s37, s2, 5")
    k.e("s_lshr_b32 s38, s3, 2")
    k.e("s_and_b32 s39, s3, 3")
    pc = k.valloc()
    xv = [k.valloc() for _ in range(4)]
    for i in range(4):
        k.e(f"v_lshl_add_u32 v{pc}, v{wv}, 2, {i}")
        x_dma_voff(k, lane, xv[i], pc)
    wvv = [k.valloc() for _ in range(2)]
    for i in range(2):
        k.e(f"v_lshl_add_u32 v{pc}, v{wv}, 1, {i}")
        w_dma_voff(k, lane, wvv[i], 256, 8192, pc)
    k.e("s_lshl_b32 s41, s37, 18"); k.e("s_lshl_b32 s42, s36, 8")
    k.e("s_lshl_b32 s43, s3, 12")
    k.e("s_lshl_b32 s44, s3, 11"); k.e("s_add_u32 s44, s44, 32768")
    lnoff = k.valloc(); lnraw = k.valloc(4, 4)
    k.e("s_lshl_b32 s40, s2, 3"); k.e("s_add_u32 s40, s40, s3"); k.e("s_lshl_b32 s40, s40, 10")
    k.e(f"v_lshlrev_b32 v{lnoff}, 4, v{lane}")
    k.srd_finish()
    def issue(st):
        b = (st % NS) * STG
        out = []
        for i in range(4): out += dma_l(xv[i], 8, 41, 43, b + i * 1024)
        for i in range(2): out += dma_l(wvv[i], 12 if st < 8 else 16, 42, 44, b + i * 1024)
        if st == 7: out += [f"s_sub_u32 s41, s41, {7 * 128}", f"s_sub_u32 s42, s42, {7 * 0x80000}"]
        else: out += ["s_add_u32 s41, s41, 128", "s_add_u32 s42, s42, 0x80000"]
        return out
    xa = [AddrReg(k, 3) for _ in range(4)]
    wa = [AddrReg(k, 3) for _ in range(2)]
    acc = [k.valloc(64, 4) for _ in range(2)]
    ring = [k.valloc(16, 4) for _ in range(2)]
    pk = k.valloc(16, 4); off = k.valloc()
    pf1 = k.valloc(); pf2 = k.valloc(); pfd = k.valloc()
    pfv, _ = prefetch_setup(k, 512, 2)
    pfinit = []
    def post_issue():
        k.e("s_lshl_b32 s58, s37, 8"); k.e("s_and_b32 s59, s36, 3"); k.e("s_lshl_b32 s59, s59, 6"); k.e("s_add_u32 s58, s58, s59")
        k.e("s_lshl_b32 s59, s3, 3"); k.e("s_add_u32 s58, s58, s59"); k.e("s_lshl_b32 s58, s58, 10")
        k.e(f"v_lshlrev_b32 v{pf1}, 10, v{lane}"); k.e(f"v_add_u32 v{pf1}, s58, v{pf1}")
        k.e(f"v_cmp_gt_u32 vcc, 8, v{lane}"); k.e(f"v_mov_b32 v{pfd}, 0x7f000000"); k.e(f"v_cndmask_b32 v{pf1}, v{pfd}, v{pf1}, vcc")
        k.e("s_lshl_b32 s58, s37, 3"); k.e("s_add_u32 s58, s58, s3"); k.e("s_lshl_b32 s58, s58, 13"); k.e("s_lshl_b32 s59, s36, 8"); k.e("s_add_u32 s58, s58, s59")
        k.e(f"v_lshlrev_b32 v{pf2}, 7, v{lane}"); k.e(f"v_add_u32 v{pf2}, s58, v{pf2}")
        k.e(f"v_cmp_gt_u32 vcc, 2, v{lane}"); k.e(f"v_cndmask_b32 v{pf2}, v{pfd}, v{pf2}, vcc")
        for x in pfinit: k.e(x)
        k.e(f"buffer_load_dwordx4 {vr(lnraw, 4)}, v{lnoff}, {sr(28, 4)}, s40 offen")
        for q in range(4):
            x_frag_addr(k, lane, xa[q].r0(), q)
            k.e("s_lshl_b32 s45, s39, 13")
            k.e(f"v_add_u32 v{xa[q].r0()}, s45, v{xa[q].r0()}")
            xa[q].finish()
        for c in range(2):
            w_frag_addr(k, lane, wa[c].r0(), 256, False, c)
            k.e("s_lshl_b32 s45, s38, 7")
            k.e(f"v_xor_b32 v{wa[c].r0()}, s45, v{wa[c].r0()}")
            k.e(f"v_add_u32 v{wa[c].r0()}, 32768, v{wa[c].r0()}")
            wa[c].finish()
        for a in acc:
            for i in range(64): k.e(f"v_mov_b32 v{a + i}, 0")
        k.e(f"v_lshlrev_b32 v{off}, 4, v{lane}")
        k.e("s_lshl_b32 s46, s36, 19"); k.e("s_lshl_b32 s47, s37, 16"); k.e("s_add_u32 s46, s46, s47")
        k.e("s_lshl_b32 s47, s39, 14"); k.e("s_add_u32 s46, s46, s47")
        k.e("s_lshl_b32 s47, s38, 11"); k.e("s_add_u32 s57, s46, s47"); k.e("s_add_u32 s56, s57, s47")
    def subs_fn(st):
        b = (st % NS) * STG; isv = st >= 8
        subs = []
        for q in range(4):
            rd = []
            for c in range(2):
                for h2 in range(2):
                    r, o = wa[c].at(b + q * 4096 + h2 * 1024)
                    rd.append((f"ds_read_b64_tr_b16 {{d}}, {r} offset:{o}", 4 * c + 2 * h2, 2))
            for x in range(2):
                r, o = xa[q].at(b + x * 4096)
                rd.append((f"ds_read_b128 {{d}}, {r} offset:{o}", 4 * (2 + x), 4))
            mf = []
            for c in range(2):
                for x in range(2):
                    a, bb = (4 * (2 + x), 4 * c) if isv else (4 * c, 4 * (2 + x))
                    mf.append((acc[isv] + 16 * (2 * c + x), a, bb, None))
            subs.append(dict(reads=rd, mf=mf))
        return subs
    def epilogue(isv):
        L = []; n = 0
        for c in range(2):
            for x in range(2):
                a = acc[isv] + 16 * (2 * c + x)
                for j in range(2):
                    p = pk + 4 * (n % 4); n += 1
                    for i in range(4):
                        L.append(f"v_cvt_pk_bf16_f32 v{p + i}, v{a + 8 * j + 2 * i}, v{a + 8 * j + 2 * i + 1}")
                    o = x * 8192 + j * 4096 + c * 1024 if isv else x * 8192 + (2 * c + j) * 1024
                    L.append(f"s_add_u32 s47, s{57 if isv else 56}, {o}")
                    L.append(f"buffer_store_dwordx4 {vr(p, 4)}, v{off}, {sr(24 if isv else 20, 4)}, s47 offen{st_flags}")
        return L
    ek = epilogue(False)
    bg = {8 + i: ek[6 * i:6 * i + 6] for i in range(8)}
    PFD = int(os.environ.get("PFD", "4"))
    def pf(st):
        L = []
        if st >= 16: return L
        if st < 8: L.append(f"s_mov_b32 s58, {st * 128}"); L.append(f"buffer_load_dword v{pfd}, v{pf1}, {sr(8, 4)}, s58 offen")
        L.append(f"s_mov_b32 s59, 0x{(st % 8) * 0x80000:x}"); L.append(f"buffer_load_dword v{pfd}, v{pf2}, {sr(12 if st < 8 else 16, 4)}, s59 offen")
        return L
    if PFD:
        for st in range(16): bg[st] = pf(st + PFD) + bg.get(st, [])
        pfinit.extend(x for st in range(2, PFD) for x in pf(st))
    bg[15] = bg[15] + [f"buffer_load_dword v{pfd}, v{pfv}, {sr(48, 4)}, 0 offen"]
    pipeline3(k, NS, 16, 6, issue, subs_fn, ring, 2, post_issue=post_issue, bg=bg, bgrate=2)
    for x in epilogue(True): k.e(x)
    f = ring[0]; t = ring[0] + 8
    unpack8(k, f, lnraw)
    ln_row(k, None, f, t)
    pack8(k, lnraw, f)
    k.e(f"buffer_store_dwordx4 {vr(lnraw, 4)}, v{lnoff}, {sr(32, 4)}, s40 offen")
    k.stamp_flush(0)
    k.label(end)
    return k
```

```python
from genlib import *
from gen_gemm import *

def pipeline(k, NS, NSTEP, npst, issue, subs_fn, ring, depth):
    for st in range(min(NS - 1, NSTEP)):
        for x in issue(st): k.e(x)
    k.stamp(1)
    for st in range(NSTEP):
        inflight = min(NS - 2, NSTEP - 1 - st)
        k.e(f"s_waitcnt vmcnt({inflight * npst})")
        k.e("s_barrier")
        if st == 0: k.stamp(2)
        if st == NSTEP // 2: k.stamp(3)
        ex = issue(st + NS - 1) if st + NS - 1 < NSTEP else []
        run_substeps(k, subs_fn(st), ring, depth, {0: ex})
    k.nops(12)
    k.stamp(4)

def pack_swap8(k, T, a):
    for i in range(4):
        k.e(f"v_cvt_pk_bf16_f32 v{T + i}, v{a + 2 * i}, v{a + 2 * i + 1}")
    k.e("s_nop 1")
    k.e(f"v_permlane32_swap_b32 v{T}, v{T + 2}")
    k.e(f"v_permlane32_swap_b32 v{T + 1}, v{T + 3}")
    k.e("s_nop 1")

def oproj_kernel(name):
    STG, NS, NSTEP = 32768, 4, 16
    k = Kern(name, 512, STG * NS, 256)
    end = k.newlabel("end")
    k.e("s_cmp_ge_u32 s2, 256"); k.e(f"s_cbranch_scc1 {end}")
    k.stamp(0)
    lane, wv = lane_consts(k)
    k.srd(8, A_WS, 16 * MB, WS_CTX); k.srd(12, A_WO, 4 * MB); k.srd(20, A_WS, 16 * MB, WS_PART)
    k.srd_finish()
    k.e("s_and_b32 s36, s2, 1"); k.e("s_lshl_b32 s36, s36, 3"); k.e("s_bfe_u32 s37, s2, 0x30003"); k.e("s_add_u32 s36, s36, s37")
    k.e("s_lshr_b32 s37, s2, 6"); k.e("s_bfe_u32 s40, s2, 0x20001")
    k.e("s_lshr_b32 s38, s3, 2"); k.e("s_and_b32 s39, s3, 3")
    l16 = k.valloc(); k.e(f"v_lshlrev_b32 v{l16}, 4, v{lane}")
    xv = k.valloc()
    k.e("s_lshr_b32 s45, s3, 1"); k.e("s_lshl_b32 s45, s45, 18"); k.e("s_and_b32 s46, s3, 1"); k.e("s_lshl_b32 s46, s46, 11")
    k.e("s_add_u32 s45, s45, s46"); k.e(f"v_add_u32 v{xv}, s45, v{l16}")
    k.e("s_lshl_b32 s41, s36, 20"); k.e("s_lshl_b32 s45, s40, 16"); k.e("s_add_u32 s41, s41, s45")
    pc = k.valloc(); wvv = [k.valloc() for _ in range(2)]
    for i in range(2):
        k.e(f"v_lshl_add_u32 v{pc}, v{wv}, 1, {i}")
        w_dma_voff(k, lane, wvv[i], 256, 1024, pc)
    k.e("s_lshl_b32 s42, s40, 20"); k.e("s_lshl_b32 s45, s37, 8"); k.e("s_add_u32 s42, s42, s45")
    k.e("s_lshl_b32 s43, s3, 11"); k.e("s_add_u32 s44, s43, 16384")
    xa = AddrReg(k, 2); k.e("s_lshl_b32 s45, s39, 12"); k.e(f"v_add_u32 v{xa.r0()}, s45, v{l16}"); xa.finish()
    wa = [AddrReg(k, 2) for _ in range(2)]
    for c in range(2):
        w_frag_addr(k, lane, wa[c].r0(), 256, True, c)
        k.e("s_lshl_b32 s45, s38, 7"); k.e(f"v_xor_b32 v{wa[c].r0()}, s45, v{wa[c].r0()}")
        k.e(f"v_add_u32 v{wa[c].r0()}, 16384, v{wa[c].r0()}"); wa[c].finish()
    acc = k.valloc(32, 4); ring = [k.valloc(12, 4) for _ in range(3)]
    for i in range(32): k.e(f"v_mov_b32 v{acc + i}, 0")
    def issue(st):
        b = (st % NS) * STG
        out = [f"s_add_u32 m0, s43, 0x{b:x}", "s_nop 0"]
        out += [f"buffer_load_dwordx4 v{xv}, {sr(8, 4)}, s41 offen offset:{i * 1024} lds" for i in range(2)]
        for i in range(2): out += dma_l(wvv[i], 12, 42, 44, b + i * 1024)
        out += ["s_add_u32 s41, s41, 4096", "s_add_u32 s42, s42, 0x10000"]
        return out
    def subs(st):
        b = (st % NS) * STG; out = []
        for s in range(4):
            rd = []
            for c in range(2):
                for h2 in range(2):
                    r, o = wa[c].at(b + s * 4096 + h2 * 2048)
                    rd.append((f"ds_read_b64_tr_b16 {{d}}, {r} offset:{o}", 4 * c + 2 * h2, 2))
            r, o = xa.at(b + s * 1024)
            rd.append((f"ds_read_b128 {{d}}, {r} offset:{o}", 8, 4))
            out.append(dict(reads=rd, mf=[(acc + 16 * c, 4 * c, 8, None) for c in range(2)]))
        return out
    pipeline3(k, NS, NSTEP, 4, issue, subs, ring, 3)
    off = ring[0]
    k.e(f"v_and_b32 v{off}, 31, v{lane}"); k.e(f"v_lshlrev_b32 v{off}, 10, v{off}")
    k.e(f"v_lshrrev_b32 v{pc}, 5, v{lane}"); k.e(f"v_lshl_add_u32 v{off}, v{pc}, 4, v{off}")
    k.e("s_lshl_b32 s45, s40, 21"); k.e("s_lshl_b32 s46, s36, 17"); k.e("s_add_u32 s45, s45, s46")
    k.e("s_lshl_b32 s46, s39, 15"); k.e("s_add_u32 s45, s45, s46")
    k.e("s_lshl_b32 s46, s37, 8"); k.e("s_add_u32 s45, s45, s46"); k.e("s_lshl_b32 s46, s38, 7"); k.e("s_add_u32 s45, s45, s46")
    for c in range(2):
        for pr in range(2):
            T = ring[1] + 4 * ((2 * c + pr) % 2) if True else 0
            T = (ring[1] if (2 * c + pr) % 2 == 0 else ring[2])
            pack_swap8(k, T, acc + 16 * c + 8 * pr)
            k.e(f"buffer_store_dwordx4 {vr(T, 4)}, v{off}, {sr(20, 4)}, s45 offen offset:{c * 64 + pr * 32}")
    k.stamp_flush(3)
    k.label(end)
    return k

def red_kernel(name):
    k = Kern(name, 256, 0, 512)
    end = k.newlabel("end")
    k.e("s_cmp_ge_u32 s2, 512"); k.e(f"s_cbranch_scc1 {end}")
    lane, wv = lane_consts(k)
    k.srd(8, A_WS, 16 * MB, WS_PART); k.srd(12, A_X, 2 * MB); k.srd(16, A_WS, 2 * MB, WS_H); k.srd(20, A_WS, 2 * MB, WS_HN)
    k.srd_finish()
    k.e("s_lshl_b32 s36, s2, 2"); k.e("s_add_u32 s36, s36, s3")
    o16 = k.valloc()
    k.e(f"v_lshlrev_b32 v{o16}, 4, v{lane}")
    p = k.valloc(32, 4); raw = k.valloc(4, 4); f = k.valloc(8, 4); t = k.valloc(3); pr = k.valloc(16, 4)
    k.e("s_lshl_b32 s38, s36, 10")
    k.e(f"buffer_load_dwordx4 {vr(raw, 4)}, v{o16}, {sr(12, 4)}, s38 offen")
    for s in range(4):
        k.e(f"s_add_u32 s39, s38, {s * 2 * MB}")
        k.e(f"buffer_load_dwordx4 {vr(pr + 4 * s, 4)}, v{o16}, {sr(8, 4)}, s39 offen")
    k.e("s_waitcnt vmcnt(0)")
    unpack8(k, f, raw)
    for s in range(4): unpack8(k, p + 8 * s, pr + 4 * s)
    for i in range(8):
        k.e(f"v_add_f32 v{p + i}, v{p + i}, v{p + 8 + i}"); k.e(f"v_add_f32 v{p + 16 + i}, v{p + 16 + i}, v{p + 24 + i}")
        k.e(f"v_add_f32 v{p + i}, v{p + i}, v{p + 16 + i}")
    pack8(k, raw, p); unpack8(k, p, raw)
    for i in range(8): k.e(f"v_add_f32 v{f + i}, v{f + i}, v{p + i}")
    pack8(k, raw, f)
    k.e(f"buffer_store_dwordx4 {vr(raw, 4)}, v{o16}, {sr(16, 4)}, s38 offen")
    unpack8(k, f, raw)
    ln_row(k, None, f, t)
    pack8(k, p, f)
    k.e(f"buffer_store_dwordx4 {vr(p, 4)}, v{o16}, {sr(20, 4)}, s38 offen")
    k.label(end)
    return k

def mlp_kernel(name, which):
    g1 = which == 1
    STG, NS = 32768, 4
    NSTEP = 16 if g1 else 14
    nwg = 224 if g1 else 256
    k = Kern(name, 512, STG * NS, nwg)
    end = k.newlabel("end")
    k.e(f"s_cmp_ge_u32 s2, {nwg}"); k.e(f"s_cbranch_scc1 {end}")
    k.stamp(0)
    lane, wv = lane_consts(k)
    if g1:
        k.srd(8, A_WS, 2 * MB, WS_HN); k.srd(12, A_W1, 2048 * 3584); k.srd(16, A_B1, 3584); k.srd(20, A_WS, 2 * MB, WS_G)
    else:
        k.srd(8, A_WS, 2 * MB, WS_G); k.srd(12, A_W2, 1792 * 4096); k.srd(16, A_B2, 4096); k.srd(20, A_OUT, 2 * MB)
        k.srd(24, A_WS, 2 * MB, WS_H)
    k.srd_finish()
    k.e("s_and_b32 s36, s2, 7"); k.e(f"s_mul_i32 s36, s36, {nwg // 8}"); k.e("s_lshr_b32 s37, s2, 3"); k.e("s_add_u32 s36, s36, s37")
    k.e("s_lshr_b32 s37, s36, 3"); k.e("s_and_b32 s36, s36, 7")
    k.e("s_lshr_b32 s40, s3, 2"); k.e("s_bfe_u32 s38, s3, 0x10001"); k.e("s_and_b32 s39, s3, 1")
    wstride = 3584 if g1 else 4096
    l16 = k.valloc(); k.e(f"v_lshlrev_b32 v{l16}, 4, v{lane}")
    pc = k.valloc(); wvv = [k.valloc() for _ in range(2)]
    for i in range(2):
        k.e(f"v_lshl_add_u32 v{pc}, v{wv}, 1, {i}")
        w_dma_voff(k, lane, wvv[i], 128, wstride, pc)
    k.e("s_lshl_b32 s42, s37, 7")
    if g1:
        xvv = [k.valloc() for _ in range(2)]
        for i in range(2):
            k.e(f"v_lshl_add_u32 v{pc}, v{wv}, 1, {i}")
            w_dma_voff(k, lane, xvv[i], 128, 1024, pc)
        k.e("s_lshl_b32 s41, s36, 7")
    else:
        xv = k.valloc()
        k.e("s_lshr_b32 s45, s3, 2"); k.e(f"s_mul_i32 s45, s45, {112 * 1024}"); k.e("s_and_b32 s46, s3, 3"); k.e("s_lshl_b32 s46, s46, 11")
        k.e("s_add_u32 s45, s45, s46"); k.e(f"v_add_u32 v{xv}, s45, v{l16}")
        k.e(f"s_mul_i32 s41, s36, {2 * 112 * 1024}")
    k.e("s_lshl_b32 s43, s3, 11"); k.e("s_add_u32 s44, s43, 16384")
    wa = AddrReg(k, 2)
    w_frag_addr(k, lane, wa.r0(), 128, not g1, 0)
    k.e("s_lshl_b32 s45, s38, 6"); k.e(f"v_xor_b32 v{wa.r0()}, s45, v{wa.r0()}")
    k.e("s_lshl_b32 s45, s40, 13"); k.e("s_add_u32 s45, s45, 16384"); k.e(f"v_add_u32 v{wa.r0()}, s45, v{wa.r0()}"); wa.finish()
    xa = AddrReg(k, 2)
    if g1:
        w_frag_addr(k, lane, xa.r0(), 128, False, 0)
        k.e("s_lshl_b32 s45, s39, 6"); k.e(f"v_xor_b32 v{xa.r0()}, s45, v{xa.r0()}")
        k.e("s_lshl_b32 s45, s40, 13"); k.e(f"v_add_u32 v{xa.r0()}, s45, v{xa.r0()}")
    else:
        k.e("s_lshl_b32 s45, s39, 13"); k.e("s_lshl_b32 s46, s40, 12"); k.e("s_add_u32 s45, s45, s46")
        k.e(f"v_add_u32 v{xa.r0()}, s45, v{l16}")
    xa.finish()
    acc = k.valloc(16, 4); ring = [k.valloc(8, 4) for _ in range(4)]
    ep = k.valloc(24, 4)
    half = k.valloc(); l32 = k.valloc(); eo = k.valloc()
    k.e(f"v_lshrrev_b32 v{half}, 5, v{lane}"); k.e(f"v_and_b32 v{l32}, 31, v{lane}")
    if g1:
        k.e(f"v_lshlrev_b32 v{eo}, 3, v{half}")
        k.e("s_lshl_b32 s45, s37, 7"); k.e("s_lshl_b32 s46, s38, 6"); k.e("s_add_u32 s45, s45, s46")
        for q in range(4):
            k.e(f"buffer_load_dwordx2 {vr(ep + 2 * q, 2)}, v{eo}, {sr(16, 4)}, s45 offen offset:{16 * q}")
    else:
        k.e(f"v_lshlrev_b32 v{eo}, 1, v{l32}")
        k.e("s_lshl_b32 s45, s37, 7"); k.e("s_lshl_b32 s46, s38, 6"); k.e("s_add_u32 s45, s45, s46")
        k.e(f"buffer_load_ushort v{ep + 8}, v{eo}, {sr(16, 4)}, s45 offen")
        k.e(f"v_lshlrev_b32 v{eo}, 10, v{l32}"); k.e(f"v_lshl_add_u32 v{eo}, v{half}, 3, v{eo}")
        k.e("s_lshl_b32 s47, s37, 16"); k.e("s_lshl_b32 s46, s38, 15"); k.e("s_add_u32 s47, s47, s46")
        k.e("s_lshl_b32 s46, s36, 7"); k.e("s_add_u32 s47, s47, s46"); k.e("s_lshl_b32 s46, s39, 6"); k.e("s_add_u32 s47, s47, s46")
        for q in range(4):
            k.e(f"buffer_load_dwordx2 {vr(ep + 2 * q, 2)}, v{eo}, {sr(24, 4)}, s47 offen offset:{16 * q}")
    for i in range(16): k.e(f"v_mov_b32 v{acc + i}, 0")
    def issue(st):
        b = (st % NS) * STG; out = []
        if g1:
            for i in range(2): out += dma_l(xvv[i], 8, 41, 43, b + i * 1024)
        else:
            out += [f"s_add_u32 m0, s43, 0x{b:x}", "s_nop 0"]
            out += [f"buffer_load_dwordx4 v{xv}, {sr(8, 4)}, s41 offen offset:{i * 1024} lds" for i in range(2)]
        for i in range(2): out += dma_l(wvv[i], 12, 42, 44, b + i * 1024)
        out += [f"s_add_u32 s41, s41, {128 * 1024 if g1 else 8192}", f"s_add_u32 s42, s42, {128 * wstride}"]
        return out
    def subs(st):
        b = (st % NS) * STG; out = []
        for s in range(4):
            rd = []
            for h2 in range(2):
                r, o = wa.at(b + s * 2048 + h2 * (512 if g1 else 1024))
                rd.append((f"ds_read_b64_tr_b16 {{d}}, {r} offset:{o}", 2 * h2, 2))
            if g1:
                for h2 in range(2):
                    r, o = xa.at(b + s * 2048 + h2 * 512)
                    rd.append((f"ds_read_b64_tr_b16 {{d}}, {r} offset:{o}", 4 + 2 * h2, 2))
            else:
                r, o = xa.at(b + s * 1024)
                rd.append((f"ds_read_b128 {{d}}, {r} offset:{o}", 4, 4))
            out.append(dict(reads=rd, mf=[(acc, 0, 4, None) if g1 else (acc, 4, 0, None)]))
        return out
    pipeline3(k, NS, NSTEP, 4, issue, subs, ring, 4)
    rb = ((NSTEP + 1) % NS) * STG
    ra = ring[0]
    k.e("s_and_b32 s45, s3, 3"); k.e("s_lshl_b32 s45, s45, 12"); k.e(f"s_add_u32 s45, s45, {rb}")
    k.e(f"v_add_u32 v{ra}, s45, v{l16}")
    k1 = k.newlabel("ks1"); k0 = k.newlabel("ks0")
    k.e("s_cmp_eq_u32 s40, 0"); k.e(f"s_cbranch_scc1 {k0}")
    for q in range(4): k.e(f"ds_write_b128 v{ra}, {vr(acc + 4 * q, 4)} offset:{q * 1024}")
    k.e("s_waitcnt lgkmcnt(0)"); k.e("s_barrier"); k.e(f"s_branch {end}")
    k.label(k0)
    k.e("s_barrier")
    rr = ring[1]
    for q in range(4): k.e(f"ds_read_b128 {vr(rr + 4 * q, 4)}, v{ra} offset:{q * 1024}")
    k.e("s_waitcnt lgkmcnt(0)")
    for i in range(16): k.e(f"v_add_f32 v{acc + i}, v{acc + i}, v{rr + i}")
    if g1:
        b = ep + 8
        unpack8(k, b, ep); unpack8(k, b + 8, ep + 4)
        c1 = -2.0 * 1.4426950408889634 * 0.7978845608028654
        k.e(f"s_mov_b32 s45, 0x{f2u(c1):x}"); k.e(f"s_mov_b32 s46, 0x{f2u(c1 * 0.044715):x}")
        for i in range(16):
            u = acc + i; t = rr + i
            k.e(f"v_add_f32 v{u}, v{u}, v{b + i}")
            k.e(f"v_mul_f32 v{t}, v{u}, v{u}")
            k.e(f"v_mov_b32 v{b + i}, s45")
            k.e(f"v_fmac_f32 v{b + i}, s46, v{t}")
            k.e(f"v_mul_f32 v{t}, v{u}, v{b + i}")
        for i in range(16): k.e(f"v_exp_f32 v{rr + i}, v{rr + i}")
        for i in range(16): k.e(f"v_add_f32 v{rr + i}, 1.0, v{rr + i}")
        for i in range(16): k.e(f"v_rcp_f32 v{rr + i}, v{rr + i}")
        for i in range(16): k.e(f"v_mul_f32 v{acc + i}, v{acc + i}, v{rr + i}")
        k.e("s_lshl_b32 s45, s36, 1"); k.e("s_add_u32 s45, s45, s39"); k.e("s_mul_i32 s45, s45, 112")
        k.e("s_lshl_b32 s46, s37, 2"); k.e("s_add_u32 s45, s45, s46"); k.e("s_lshl_b32 s46, s38, 1"); k.e("s_add_u32 s45, s45, s46")
        k.e("s_lshl_b32 s45, s45, 10")
        for j in range(2):
            pack8(k, rr + 4 * j, acc + 8 * j)
            k.e(f"buffer_store_dwordx4 {vr(rr + 4 * j, 4)}, v{l16}, {sr(20, 4)}, s45 offen offset:{1024 * j}")
    else:
        b = ep + 8
        k.e(f"v_lshlrev_b32 v{rr}, 16, v{b}")
        for i in range(16): k.e(f"v_add_f32 v{acc + i}, v{acc + i}, v{rr}")
        hh = ep + 8
        unpack8(k, hh, ep); unpack8(k, hh + 8, ep + 4)
        for i in range(16): k.e(f"v_add_f32 v{acc + i}, v{acc + i}, v{hh + i}")
        k.e(f"v_lshl_add_u32 v{eo}, v{half}, 3, v{eo}")
        for pr in range(2):
            pack_swap8(k, rr + 4 * pr, acc + 8 * pr)
            k.e(f"buffer_store_dwordx4 {vr(rr + 4 * pr, 4)}, v{eo}, {sr(20, 4)}, s47 offen offset:{32 * pr}")
    k.stamp_flush(4 + which)
    k.label(end)
    return k
```

```python
NAME = "sequential_preLN__compressed_kv_cla__mixer_token_mlp__prompt"

A_X, A_CKV, A_WQ, A_WUK, A_WUV, A_WO, A_BX, A_W1, A_B1, A_W2, A_B2, A_OUT, A_DBG, A_WS = [8 * i for i in range(14)]

MB = 1 << 20
WS_XN = 0
WS_Q = 2 * MB
WS_K = 18 * MB
WS_V = 34 * MB
WS_CTX = 50 * MB
WS_PART = 66 * MB
WS_H = 82 * MB
WS_HN = 84 * MB
WS_G = 86 * MB
WS_SIZE = 268435456


def vr(b, n=1):
    return f"v{b}" if n == 1 else f"v[{b}:{b + n - 1}]"


def sr(b, n=1):
    return f"s{b}" if n == 1 else f"s[{b}:{b + n - 1}]"


class Kern:
    def __init__(self, name, nthreads, lds, grid):
        self.name, self.nthreads, self.lds, self.grid = name, nthreads, lds, grid
        self.L = []
        self.nv = 1
        self.maxv = 1
        self.lab = 0

    vm = 0

    def e(self, s):
        if s.startswith("buffer_") or s.startswith("global_"): self.vm += 1
        self.L.append("    " + s)

    def label(self, s):
        self.L.append(s + ":")

    def newlabel(self, base):
        self.lab += 1
        return f".L{self.name[:6]}_{base}_{self.lab}"

    def valloc(self, n=1, align=1):
        if n >= 2 and align < 2:
            align = 2
        b = (self.nv + align - 1) // align * align
        self.nv = b + n
        self.maxv = max(self.maxv, self.nv)
        assert self.nv <= 256, f"{self.name}: out of VGPRs"
        return b

    def srd(self, dst, karg_off, nbytes, add=0):
        self.e(f"s_load_dwordx2 {sr(dst, 2)}, s[0:1], {karg_off}")
        self.pending_srd = getattr(self, "pending_srd", [])
        self.pending_srd.append((dst, nbytes, add))

    def srd_finish(self):
        self.e("s_waitcnt lgkmcnt(0)")
        for dst, nbytes, add in self.pending_srd:
            if add:
                self.e(f"s_add_u32 s{dst}, s{dst}, 0x{add:x}")
                self.e(f"s_addc_u32 s{dst + 1}, s{dst + 1}, 0")
            self.e(f"s_and_b32 s{dst + 1}, s{dst + 1}, 0xffff")
            self.e(f"s_mov_b32 s{dst + 2}, 0x{nbytes:x}")
            self.e(f"s_mov_b32 s{dst + 3}, 0x20000")
        self.pending_srd = []

    STAMPS = False
    KIDX = 0

    def stamp(self, i):
        if not Kern.STAMPS: return
        self.e(f"s_memrealtime s[{64 + 2 * i}:{65 + 2 * i}]")
        if i == 0: self.e("s_memtime s[92:93]")
        if i == 7: self.e("s_memtime s[94:95]")
        self.e("s_waitcnt lgkmcnt(0)")

    def stamp_flush(self, idx):
        if not Kern.STAMPS: return
        skip = self.newlabel("nost")
        self.stamp(6); self.e("s_waitcnt vmcnt(0)"); self.stamp(7)
        self.e("s_cmp_lg_u32 s3, 0"); self.e(f"s_cbranch_scc1 {skip}")
        self.e("s_load_dwordx2 s[62:63], s[0:1], 104"); self.e("s_waitcnt lgkmcnt(0)")
        self.e(f"s_add_u32 s62, s62, 0x{100 * MB + idx * 65536:x}"); self.e("s_addc_u32 s63, s63, 0")
        self.e("s_lshl_b32 s65, s2, 6")
        self.e("v_mov_b32 v0, s65")
        for i in range(8):
            self.e(f"v_mov_b32 v1, s{64 + 2 * i}") if i else self.e("v_mov_b32 v1, s64")
            self.e(f"global_store_dword v0, v1, s[62:63] offset:{4 * i}")
        self.e("s_sub_u32 s94, s94, s92"); self.e("v_mov_b32 v1, s94")
        self.e("global_store_dword v0, v1, s[62:63] offset:32")
        self.label(skip)

    def nops(self, n):
        while n > 0:
            k = min(n, 16)
            self.e(f"s_nop {k - 1}")
            n -= k

    def text(self):
        nv = (self.maxv + 7) // 8 * 8
        hdr = [f".globl {self.name}", ".p2align 8", f".type {self.name},@function", f"{self.name}:"]
        return "\n".join(hdr + self.L + ["    s_endpgm"]) + "\n"

    def desc(self):
        nv = max(8, (self.maxv + 7) // 8 * 8)
        return "\n".join([
            ".p2align 6", f".amdhsa_kernel {self.name}",
            f"  .amdhsa_next_free_vgpr {nv}", "  .amdhsa_next_free_sgpr 96",
            f"  .amdhsa_accum_offset {nv}", "  .amdhsa_group_segment_fixed_size 0",
            "  .amdhsa_kernarg_size 112", "  .amdhsa_user_sgpr_count 2",
            "  .amdhsa_user_sgpr_kernarg_segment_ptr 1", "  .amdhsa_system_sgpr_workgroup_id_x 1",
            ".end_amdhsa_kernel"]) + "\n"

    def launch(self):
        return f"; @launch kernel={self.name} grid=({self.grid},1,1) block=({self.nthreads},1,1) lds={self.lds}"


class AddrReg:
    def __init__(self, k, nwin=1):
        self.k = k
        self.regs = [k.valloc() for _ in range(nwin)]

    def r0(self):
        return self.regs[0]

    def finish(self):
        for i in range(1, len(self.regs)):
            self.k.e(f"v_add_u32 v{self.regs[i]}, 0x{65536 * i:x}, v{self.regs[0]}")

    def at(self, off):
        w = off >> 16
        return f"v{self.regs[w]}", off & 0xFFFF


def wave_sum(k, v, t):
    for mod in ["quad_perm:[1,0,3,2]", "quad_perm:[2,3,0,1]", "row_half_mirror", "row_mirror"]:
        k.e("s_nop 1")
        k.e(f"v_add_f32_dpp v{v}, v{v}, v{v} {mod} row_mask:0xf bank_mask:0xf")
    for sw in ["v_permlane16_swap_b32", "v_permlane32_swap_b32"]:
        k.e(f"v_mov_b32 v{t}, v{v}")
        k.e("s_nop 1")
        k.e(f"{sw} v{v}, v{t}")
        k.e("s_nop 1")
        k.e(f"v_add_f32 v{v}, v{v}, v{t}")


def mfma(k, d, a, b, c=None):
    cs = vr(d, 16) if c is None else (c if isinstance(c, str) else vr(c, 16))
    k.e(f"v_mfma_f32_32x32x16_bf16 {vr(d, 16)}, {vr(a, 4)}, {vr(b, 4)}, {cs}")


def run_substeps(k, subs, ring, depth, extra=None):
    n = len(subs)
    issued = []

    def emit_reads(s):
        base = ring[s % depth]
        return [fmt.format(d=vr(base + off, nr)) for (fmt, off, nr) in subs[s]["reads"]]

    pre = min(depth - 1, n) if depth > 1 else 1
    for s in range(pre):
        for r in emit_reads(s):
            k.e(r)
    nissued = pre
    for s in range(n):
        later = sum(len(subs[t]["reads"]) for t in range(s + 1, nissued))
        k.e(f"s_waitcnt lgkmcnt({min(later, 15)})")
        nxt = emit_reads(nissued) if nissued < n else []
        if nissued < n:
            nissued += 1
        mf = subs[s]["mf"]
        base = ring[s % depth]
        ex = list(extra.get(s, [])) if extra else []
        per = -(-len(nxt) // max(1, len(mf) - 1)) if len(mf) > 1 else len(nxt)
        per = max(per, 2) if nxt else 0
        for i, (acc, ao, bo, ci) in enumerate(mf):
            if depth == 1 and i == 0:
                pass
            mfma(k, acc, base + ao, base + bo, ci)
            for r in nxt[:per]:
                k.e(r)
            nxt = nxt[per:]
            if ex:
                for x in ex[:2]:
                    k.e(x)
                ex = ex[2:]
        for r in nxt:
            k.e(r)
        for x in ex:
            k.e(x)


def pipeline3(k, NS, NSTEP, npst, issue, subs_fn, ring, depth, post_issue=None, bg=None, bgrate=2):
    done = {}
    def emit(x):
        if isinstance(x, tuple): done[x[1]] = k.vm
        else: k.e(x)
    def iss(st):
        L = issue(st)
        last = max(i for i, x in enumerate(L) if x.startswith("buffer_"))
        return L[:last + 1] + [("mark", st)] + L[last + 1:]
    for st in range(min(NS - 1, NSTEP)):
        for x in iss(st): emit(x)
    if post_issue: post_issue()
    k.stamp(1)
    subs = []; first = {}
    for st in range(NSTEP):
        first[len(subs)] = st
        subs += subs_fn(st)
    n = len(subs)
    ex = []; bgq = []
    mps = sum(len(x["mf"]) for x in subs_fn(0))
    rate = max(3, -(-len(issue(0)) // max(1, mps - 2)))

    def emit_reads(s):
        base = ring[s % depth]
        return [fmt.format(d=vr(base + off, nr)) for (fmt, off, nr) in subs[s]["reads"]]

    def bar(st):
        for x in ex: emit(x)
        del ex[:]
        k.e(f"s_waitcnt vmcnt({min(63, k.vm - done[st])}) lgkmcnt(0)")
        k.e("s_barrier")
        if st == 0: k.stamp(2)
        if st == NSTEP // 2: k.stamp(3)
        nx = st - 1 + NS
        return iss(nx) if nx < NSTEP else []

    pre = depth - 1
    for s in range(pre):
        if s in first: ex.extend(bar(first[s]))
        for r in emit_reads(s): k.e(r)
    nissued = pre
    for s in range(n):
        nxt = []
        drained = False
        if bg and (s - 1) in first and first[s - 1] in bg: bgq.extend(bg[first[s - 1]])
        if nissued < n:
            if nissued in first:
                ex.extend(bar(first[nissued])); drained = True
            nxt = emit_reads(nissued); nissued += 1
        if not drained:
            later = sum(len(subs[t]["reads"]) for t in range(s + 1, nissued - (1 if nxt else 0)))
            k.e(f"s_waitcnt lgkmcnt({min(later, 15)})")
        mf = subs[s]["mf"]
        base = ring[s % depth]
        nm = len(mf)
        per = max(2, -(-len(nxt) // max(1, nm - 1))) if nm > 1 else len(nxt)
        for i, (acc, ao, bo, ci) in enumerate(mf):
            mfma(k, acc, base + ao, base + bo, ci)
            for r in nxt[:per]: k.e(r)
            nxt = nxt[per:]
            if not nxt or i > 0:
                if ex:
                    for x in ex[:rate]: emit(x)
                    del ex[:rate]
                else:
                    for x in bgq[:bgrate]: k.e(x)
                    del bgq[:bgrate]
        for r in nxt: k.e(r)
    for x in ex: emit(x)
    for x in bgq: k.e(x)
    k.nops(12)
    k.stamp(4)


def prefetch_setup(k, nthreads, shift=0):
    voff = k.valloc(); dummy = k.valloc()
    k.e(f"s_mul_i32 s63, s2, {nthreads}")
    k.e(f"v_add_u32 v{voff}, s63, v0")
    if shift: k.e(f"v_lshrrev_b32 v{voff}, {shift}, v{voff}")
    k.e(f"v_lshlrev_b32 v{voff}, 7, v{voff}")
    return voff, dummy

def self_prefetch_rows(k, v, t):
    k.e("s_lshr_b32 s63, s2, 3"); k.e("s_lshl_b32 s63, s63, 16")
    k.e(f"v_lshlrev_b32 v{v}, 7, v0"); k.e(f"v_add_u32 v{v}, s63, v{v}")

def self_prefetch_w(k, v, t):
    k.e("s_lshr_b32 s63, s2, 3"); k.e("s_lshl_b32 s63, s63, 17")
    k.e("s_and_b32 s62, s2, 7"); k.e("s_lshl_b32 s62, s62, 10"); k.e("s_add_u32 s63, s63, s62")
    k.e(f"v_bfe_u32 v{t}, v0, 3, 4"); k.e(f"v_lshlrev_b32 v{v}, 13, v{t}")
    k.e(f"v_and_b32 v{t}, 7, v0"); k.e(f"v_lshl_add_u32 v{v}, v{t}, 7, v{v}")
    k.e(f"v_add_u32 v{v}, s63, v{v}")

def prefetch(k, voff, dummy, srd):
    k.e(f"buffer_load_dword v{dummy}, v{voff}, {sr(srd, 4)}, 0 offen")
```

```python
import sys, os
from genlib import *
from gen_gemm import *
from gen_attn import *
from gen_rest import *

def build(upto=99):
    ks = [kv_kernel("kvproj_kernel", os.environ.get("KVST", "")), attn_kernel("attn_kernel"),
          oproj_kernel("oproj_kernel"), red_kernel("red_kernel"), mlp_kernel("mlpa_kernel", 1), mlp_kernel("mlpb_kernel", 2)]
    ks = ks[:upto]
    hdr = open("cdna_kernels/" + NAME + ".s.ref").read().split("; Override")[0]

    dup = 2 if os.environ.get("DUP") else 1
    out = hdr + "\n".join(k.launch() for k in ks for _ in range(dup)) + "\n"
    out += '.amdgcn_target "amdgcn-amd-amdhsa--gfx950"\n.text\n'
    for k in ks: out += k.text()
    out += '.section .rodata,"a"\n'
    for k in ks: out += k.desc()
    return out

if __name__ == "__main__":
    upto = int(sys.argv[2]) if len(sys.argv) > 2 else 99
    if len(sys.argv) > 3: Kern.STAMPS = True
    open(sys.argv[1], "w").write(build(upto))
```

```python
from genlib import *
from gen_gemm import *

def attn_kernel(name):
    k = Kern(name, 512, 163840, 256)
    end = k.newlabel("end")
    k.e("s_cmp_ge_u32 s2, 256"); k.e(f"s_cbranch_scc1 {end}")
    k.stamp(0)
    lane, wv = lane_consts(k)
    k.srd(8, A_WS, 2 * MB, WS_XN); k.srd(80, A_WQ, 4 * MB); k.srd(12, A_WS, 16 * MB, WS_K); k.srd(16, A_WS, 16 * MB, WS_V)
    k.srd(20, A_WS, 16 * MB, WS_CTX)
    k.srd(24, A_WO, 4 * MB); k.srd(28, A_W1, 2048 * 3584); k.srd(32, A_W2, 1792 * 4096)
    k.srd_finish()
    pfv, pfd = prefetch_setup(k, 512, 1)
    k.e("s_and_b32 s36, s2, 7"); k.e("s_lshl_b32 s36, s36, 2"); k.e("s_bfe_u32 s37, s2, 0x20003")
    k.e("s_add_u32 s36, s36, s37")
    k.e("s_lshr_b32 s37, s2, 5")
    k.e("s_lshr_b32 s38, s3, 2")
    k.e("s_and_b32 s39, s3, 3")
    l16 = k.valloc()
    dmv = k.valloc()
    vK = k.valloc(); vV = k.valloc()
    k.e(f"v_lshlrev_b32 v{l16}, 4, v{lane}")
    k.e("s_lshl_b32 s48, s39, 12"); k.e(f"v_add_u32 v{dmv}, s48, v{l16}")
    thr = k.valloc()
    t0 = k.valloc(); t1 = k.valloc(); t2 = k.valloc(); t3 = k.valloc()
    k.e(f"v_and_b32 v{thr}, 31, v{lane}"); k.e("s_lshl_b32 s48, s39, 5"); k.e(f"v_add_u32 v{thr}, s48, v{thr}")
    k.e("s_lshl_b32 s48, s38, 6"); k.e(f"v_subrev_u32 v{thr}, s48, v{thr}")
    k.e(f"v_lshrrev_b32 v{t0}, 5, v{lane}"); k.e(f"v_lshlrev_b32 v{t0}, 2, v{t0}"); k.e(f"v_sub_u32 v{thr}, v{thr}, v{t0}")
    ninf = k.valloc(); k.e(f"v_mov_b32 v{ninf}, 0xff800000")
    Q = k.valloc(32, 4); O = k.valloc(64, 4); S = k.valloc(32, 4); NM = k.valloc(16, 4); P = k.valloc(16, 4)
    FR = k.valloc(32, 4)
    ls = k.valloc(4, 2); mx = k.valloc(2, 2)
    trv = k.valloc()
    k.e("s_cmp_lt_u32 s39, 2"); k.e("s_cselect_b32 s49, s38, 0")
    k.e("s_mul_i32 s50, s38, 0xc000")
    k.e("s_cmp_eq_u32 s38, 0")
    k.e("s_mov_b32 s88, 0x4000"); k.e("s_cselect_b32 s88, s88, 0x1c000")
    k.e("s_mov_b32 s89, 0x10000"); k.e("s_cselect_b32 s89, s89, 0x8000")
    k.e("s_lshl_b32 s51, s36, 19"); k.e("s_lshl_b32 s48, s38, 14"); k.e("s_add_u32 s51, s51, s48")

    def astamp(a, b):
        if not Kern.STAMPS: return
        k.stamp(13)
        k.e("s_cmp_eq_u32 s52, 0")
        k.e(f"s_cselect_b32 s{64 + 2 * a}, s90, s{64 + 2 * a}"); k.e(f"s_cselect_b32 s{64 + 2 * b}, s{64 + 2 * b}, s90")

    import os
    APROF = os.environ.get("APROF")
    def ap(i):
        if not APROF: return
        if APROF == "2":
            if i not in (0, 2, 3, 5): return
            k.e("s_memtime s[96:97]"); k.e("s_waitcnt lgkmcnt(0)")
            k.e("s_mov_b32 s101, m0"); k.e("s_mov_b32 m0, s100"); k.e("s_nop 1"); k.e(f"v_writelane_b32 v{trv}, s96, m0"); k.e("s_mov_b32 m0, s101"); k.e("s_add_u32 s100, s100, 1"); k.e("s_min_u32 s100, s100, 63")
            return
        k.e("s_memtime s[96:97]"); k.e("s_waitcnt lgkmcnt(0)")
        k.e("s_sub_u32 s99, s96, s98"); k.e(f"s_add_u32 s{64 + i}, s{64 + i}, s99"); k.e("s_mov_b32 s98, s96")
    PKADD = int(os.environ.get("PKADD", "0")); SPR0 = float(os.environ.get("SPR0", "0.0")); SPRF = float(os.environ.get("SPRF", "0.9"))
    PRIO = int(os.environ.get("PRIO", "0"))
    def dma_groups():
        G = []
        for t, (srd, soff, m0r) in enumerate(((12, 43, 45), (16, 44, 46))):
            for i in range(4):
                g = [f"s_mov_b32 m0, s{m0r}", "s_nop 0"] if i == 0 else []
                g.append(f"buffer_load_dwordx4 v{dmv}, {sr(srd, 4)}, s{soff} offen offset:{i * 1024} lds")
                G.append(g)
        G[-1] += ["s_add_u32 s43, s43, 0x8000", "s_add_u32 s44, s44, 0x8000", "s_xor_b32 s45, s45, s88", "s_xor_b32 s46, s46, s89"]
        return G
    def dma_tile(srd, soff, m0reg):
        k.e(f"s_mov_b32 m0, s{m0reg}"); k.e("s_nop 0")
        for i in range(4):
            k.e(f"buffer_load_dwordx4 v{dmv}, {sr(srd, 4)}, s{soff} offen offset:{i * 1024} lds")

    def seq_pv():
        return [("v", (kc * 4 + db) * 1024, O + 16 * db, "A", P + 4 * kc, None) for kc in range(4) for db in range(4)]
    def seq_qk():
        out = []
        for ds in range(8):
            for kb in range(2):
                out.append(("k", (kb * 8 + ds) * 1024, S + 16 * kb, "A", Q + 4 * ds, NM if ds == 0 else None))
        return out
    PRE = 7
    def rd(seq, i):
        t, off = seq[i][0], seq[i][1]
        k.e(f"ds_read_b128 {vr(FR + 4 * (i % 8), 4)}, v{vK if t == 'k' else vV} offset:{off}")
    def preread(seq):
        for i in range(PRE): rd(seq, i)
    def mphase(seq, prof=False):
        n = len(seq)
        for i in range(n):
            later = min(n - 1, i + PRE - 1) - i
            k.e(f"s_waitcnt lgkmcnt({later})")
            _, _, acc, _, b, ci = seq[i]
            mfma(k, acc, FR + 4 * (i % 8), b, ci)
            if i + PRE < n: rd(seq, i + PRE)
        if prof: ap(4)
        k.e("s_waitcnt vmcnt(0)")
        if prof: ap(5)
        k.nops(10)
        k.e("s_barrier")
        if prof: ap(0)

    def softmax(slow, back, extra=()):
        L = []
        L.append((4, f"v_max3_f32 v{mx}, v{S}, v{S + 1}, v{S + 2}"))
        L.append((4, f"v_max3_f32 v{mx + 1}, v{S + 16}, v{S + 17}, v{S + 18}"))
        for i in range(3, 15, 2):
            L.append((4, f"v_max3_f32 v{mx}, v{mx}, v{S + i}, v{S + i + 1}"))
            L.append((4, f"v_max3_f32 v{mx + 1}, v{mx + 1}, v{S + 16 + i}, v{S + 16 + i + 1}"))
        L.append((4, f"v_max3_f32 v{mx}, v{mx}, v{S + 15}, v{S + 31}"))
        L.append((4, f"v_max_f32 v{mx}, v{mx}, v{mx + 1}"))
        L.append((0, [f"v_cmp_lt_f32 vcc, 0x41c00000, v{mx}", "s_cmp_lg_u32 s47, 0", f"s_cbranch_scc1 {slow}",
                      f"s_cbranch_vccnz {slow}", ("label", back)]))
        for i in range(17):
            if i < 16:
                L.append((8, f"v_exp_f32 v{S + 2 * i}, v{S + 2 * i}")); L.append((8, f"v_exp_f32 v{S + 2 * i + 1}, v{S + 2 * i + 1}"))
            if i > 0:
                a = S + 2 * (i - 1)
                if i == 16: L.append((1, "s_nop 0"))
                if PKADD:
                    L.append((8, f"v_pk_add_f32 {vr(ls + 2 * (i % 2), 2)}, {vr(ls + 2 * (i % 2), 2)}, {vr(a, 2)}"))
                else:
                    L.append((4, f"v_add_f32 v{ls + 2 * (i % 2)}, v{ls + 2 * (i % 2)}, v{a}"))
                    L.append((4, f"v_add_f32 v{ls + 2 * (i % 2) + 1}, v{ls + 2 * (i % 2) + 1}, v{a + 1}"))
                L.append((4, f"v_cvt_pk_bf16_f32 v{P + i - 1}, v{a}, v{a + 1}"))
        tot = sum(c for c, _ in L); ex = list(extra); ne = len(ex); acc = 0; done = 0
        for c, x in L:
            while done < ne and acc >= (done + SPR0) * tot * SPRF / ne:
                for y in ex[done]: k.e(y)
                done += 1
            if isinstance(x, list):
                for y in x:
                    if isinstance(y, tuple): k.label(y[1])
                    else: k.e(y)
            else: k.e(x)
            acc += c
        for g in ex[done:]:
            for y in g: k.e(y)

    def slowpath(slow, back):
        k.label(slow)
        k.e(f"v_mov_b32 v{t0}, v{mx}"); k.e("s_nop 1")
        k.e(f"v_permlane32_swap_b32 v{mx}, v{t0}"); k.e("s_nop 1")
        k.e(f"v_max_f32 v{mx}, v{mx}, v{t0}")
        nf = k.newlabel("nf"); dn = k.newlabel("dn")
        k.e("s_cmp_lg_u32 s47, 0"); k.e(f"s_cbranch_scc1 {dn}")
        k.e(f"v_max_f32 v{mx}, 0, v{mx}")
        k.e(f"v_sub_f32 v{t0}, 0, v{mx}"); k.e(f"v_exp_f32 v{t0}, v{t0}"); k.e("s_nop 0")
        for i in range(64): k.e(f"v_mul_f32 v{O + i}, v{O + i}, v{t0}")
        for i in range(4): k.e(f"v_mul_f32 v{ls + i}, v{ls + i}, v{t0}")
        k.label(dn)
        k.e("s_mov_b32 s47, 0")
        for i in range(32): k.e(f"v_sub_f32 v{S + i}, v{S + i}, v{mx}")
        for i in range(16): k.e(f"v_sub_f32 v{NM + i}, v{NM + i}, v{mx}")
        k.e(f"s_branch {back}")

    def toggles():
        k.e(f"v_xor_b32 v{vK}, s88, v{vK}"); k.e(f"v_xor_b32 v{vV}, s89, v{vV}")

    def vphase_dma():
        sk = k.newlabel("sk"); sv = k.newlabel("sv")
        k.e("s_add_u32 s48, s41, 2"); k.e("s_cmp_gt_u32 s48, s42"); k.e(f"s_cbranch_scc1 {sk}")
        dma_tile(12, 43, 45)
        k.label(sk)
        dma_tile(16, 44, 46)
        k.e("s_add_u32 s43, s43, 0x8000"); k.e("s_add_u32 s44, s44, 0x8000")
        k.e("s_xor_b32 s45, s45, s88"); k.e("s_xor_b32 s46, s46, s89")

    slow1, back1, slow2, back2 = [k.newlabel(x) for x in ("slow", "back", "slow", "back")]
    blk = k.newlabel("blk"); loop = k.newlabel("loop"); last = k.newlabel("last")
    save = k.nv; k.nv = S
    xv = [k.valloc() for _ in range(4)]; pc = k.valloc()
    for i in range(4):
        k.e(f"v_mov_b32 v{pc}, {i}")
        x_dma_voff(k, lane, xv[i], pc)
    wvv = [k.valloc() for _ in range(2)]
    for i in range(2):
        k.e(f"v_lshl_add_u32 v{pc}, v{wv}, 1, {i}")
        w_dma_voff(k, lane, wvv[i], 256, 8192, pc)
    k.e("s_sub_u32 s42, 15, s37"); k.e("s_cmp_eq_u32 s38, 0"); k.e("s_cselect_b32 s84, s42, s37")
    k.e("s_lshl_b32 s84, s84, 2"); k.e("s_add_u32 s84, s84, s39"); k.e("s_lshl_b32 s84, s84, 15")
    k.e("s_lshl_b32 s85, s36, 8")
    k.e("s_lshl_b32 s86, s3, 12"); k.e("s_lshl_b32 s87, s3, 11"); k.e("s_add_u32 s87, s87, 32768")
    QSTG = 49152
    xa = [AddrReg(k, 3) for _ in range(4)]
    for q in range(4):
        x_frag_addr(k, lane, xa[q].r0(), q)
        k.e(f"v_add_u32 v{xa[q].r0()}, s86, v{xa[q].r0()}")
        xa[q].finish()
    wa = [AddrReg(k, 3) for _ in range(4)]
    for c in range(4):
        w_frag_addr(k, lane, wa[c].r0(), 256, False, c)
        k.e(f"v_add_u32 v{wa[c].r0()}, 32768, v{wa[c].r0()}")
        wa[c].finish()
    assert k.nv <= S + 32 + 3, k.nv - S
    k.nv = save
    for i in range(64): k.e(f"v_mov_b32 v{O + i}, 0")
    def qissue(st):
        b = (st % 3) * QSTG; out = []
        for i in range(4): out += dma_l(xv[i], 8, 84, 86, b + i * 1024)
        for i in range(2): out += dma_l(wvv[i], 80, 85, 87, b + i * 1024)
        out += ["s_add_u32 s84, s84, 128", "s_add_u32 s85, s85, 0x80000"]
        return out
    def qsubs(st):
        b = (st % 3) * QSTG; subs = []
        for q in range(4):
            rd = []
            for c in range(4):
                for h2 in range(2):
                    r, o = wa[c].at(b + q * 4096 + h2 * 1024)
                    rd.append((f"ds_read_b64_tr_b16 {{d}}, {r} offset:{o}", 4 * c + 2 * h2, 2))
            r, o = xa[q].at(b)
            rd.append((f"ds_read_b128 {{d}}, {r} offset:{o}", 16, 4))
            subs.append(dict(reads=rd, mf=[(O + 16 * c, 4 * c, 16, None) for c in range(4)]))
        return subs
    assert FR == P + 16
    def qpost():
        self_prefetch_rows(k, t1, t2); prefetch(k, t1, pfd, 8)
        self_prefetch_w(k, t3, t2); prefetch(k, t3, pfd, 80)
    pipeline3(k, 3, 8, 6, qissue, qsubs, [P, P + 20], 2)
    k.e(f"s_mov_b32 s48, 0x{f2u(SCALE_Q):x}")
    for i in range(64): k.e(f"v_mul_f32 v{O + i}, s48, v{O + i}")
    for i in range(32): k.e(f"v_cvt_pk_bf16_f32 v{Q + i}, v{O + 2 * i}, v{O + 2 * i + 1}")
    k.e("s_lshl_b32 s48, s3, 13"); k.e("s_add_u32 s48, s48, 0x18000")
    k.e(f"v_add_u32 v{t0}, s48, v{l16}")
    for ds in range(8): k.e(f"ds_write_b128 v{t0}, {vr(Q + 4 * ds, 4)} offset:{ds * 1024}")
    k.e("s_mov_b32 s52, 0")
    if APROF:
        for i in range(8): k.e(f"s_mov_b32 s{64 + i}, 0")
        k.e("s_mov_b32 s98, 0"); k.e("s_mov_b32 s100, 0")
    k.label(blk)
    k.e("s_lshl_b32 s48, s39, 12")
    k.e("s_add_u32 s45, s50, s48")
    k.e("s_add_u32 s46, s45, 0x8000")
    k.e("s_mov_b32 s43, s51"); k.e("s_mov_b32 s44, s51")
    def kvpro():
        k.e(f"s_mov_b32 s14, 0x{16 * MB:x}")
        dma_tile(12, 43, 45); dma_tile(16, 44, 46)
        k.e("s_add_u32 s43, s43, 0x8000"); k.e("s_add_u32 s44, s44, 0x8000")
        k.e("s_xor_b32 s45, s45, s88"); k.e("s_xor_b32 s46, s46, s89")
        nk1 = k.newlabel("nk1")
        k.e("s_cmp_eq_u32 s42, 0"); k.e(f"s_cbranch_scc1 {nk1}")
        dma_tile(12, 43, 45)
        k.label(nk1)
        k.e("s_add_u32 s43, s43, 0x8000"); k.e("s_xor_b32 s45, s45, s88")
    b2 = k.newlabel("b2"); pj = k.newlabel("pj"); g1p = k.newlabel("g1p")
    k.e("s_cmp_lg_u32 s52, 0"); k.e(f"s_cbranch_scc1 {b2}")
    k.e("s_cmp_lg_u32 s38, 0"); k.e(f"s_cbranch_scc1 {g1p}")
    kvpro()
    k.e("s_waitcnt lgkmcnt(0)"); k.e("s_barrier")
    k.e(f"s_branch {pj}")
    k.label(g1p)
    k.e("s_waitcnt lgkmcnt(0)"); k.e("s_barrier")
    kvpro()
    k.e("s_lshl_b32 s48, s39, 13"); k.e("s_add_u32 s48, s48, 0x18000"); k.e(f"v_add_u32 v{t0}, s48, v{l16}")
    for ds in range(8): k.e(f"ds_read_b128 {vr(Q + 4 * ds, 4)}, v{t0} offset:{ds * 1024}")
    k.e(f"s_branch {pj}")
    k.label(b2)
    kvpro()
    k.e("s_lshl_b32 s48, s39, 13"); k.e("s_add_u32 s48, s48, 0x20000"); k.e(f"v_add_u32 v{t0}, s48, v{l16}")
    for ds in range(8): k.e(f"ds_read_b128 {vr(Q + 4 * ds, 4)}, v{t0} offset:{ds * 1024}")
    for x in (24, 28, 32): prefetch(k, pfv, pfd, x)
    k.label(pj)
    k.e(f"v_add_u32 v{vK}, s50, v{l16}"); k.e(f"v_add_u32 v{vV}, 0x8000, v{vK}"); k.e(f"v_xor_b32 v{vV}, s89, v{vV}")
    for i in range(64): k.e(f"v_mov_b32 v{O + i}, 0")
    for i in range(16): k.e(f"v_mov_b32 v{NM + i}, 0")
    for i in range(4): k.e(f"v_mov_b32 v{ls + i}, 0")
    k.e("s_mov_b32 s47, 1"); k.e("s_mov_b32 s41, 0")
    npf = k.newlabel("npf"); pfd2 = k.newlabel("pfd")
    k.e("s_cmp_eq_u32 s52, 0"); k.e(f"s_cbranch_scc1 {npf}")
    k.e("s_waitcnt vmcnt(3) lgkmcnt(0)"); k.e(f"s_branch {pfd2}")
    k.label(npf)
    k.e("s_waitcnt vmcnt(0) lgkmcnt(0)")
    k.label(pfd2)
    k.e("s_barrier")
    astamp(1, 4)
    g0a = k.newlabel("g0a")
    k.e("s_cmp_eq_u32 s38, 0"); k.e(f"s_cbranch_scc1 {g0a}"); k.e("s_barrier"); k.label(g0a)
    preread(seq_qk()); mphase(seq_qk())
    k.e("s_cmp_eq_u32 s42, 0"); k.e(f"s_cbranch_scc1 {last}")
    ap(7)
    k.label(loop)
    if PRIO: k.e("s_setprio 0")
    toggles()
    sq = seq_pv() + seq_qk()
    k.e("s_add_u32 s48, s41, 2"); k.e("s_cmp_gt_u32 s48, s42"); k.e(f"s_cselect_b32 s14, 0, 0x{16 * MB:x}")
    preread(sq)
    ap(1)
    softmax(slow1, back1, dma_groups())
    ap(2)
    k.e("s_barrier")
    if PRIO: k.e("s_setprio 1")
    ap(3)
    mphase(sq, True)
    if APROF: k.e("s_add_u32 s70, s70, 1")
    k.e("s_add_u32 s41, s41, 1"); k.e("s_cmp_lt_u32 s41, s42"); k.e(f"s_cbranch_scc1 {loop}")
    k.label(last)
    if PRIO: k.e("s_setprio 0")
    skipl = k.newlabel("skipl"); skip2 = k.newlabel("skip2")
    k.e("s_cmp_lg_u32 s49, 0"); k.e(f"s_cbranch_scc1 {skipl}")
    toggles()
    preread(seq_pv())
    for r0 in range(0, 32, 4):
        for e4 in range(4):
            r = r0 + e4; c = 32 * (r // 16) + 8 * ((r % 16) // 4) + (r % 4)
            k.e(f"v_cmp_lt_i32 {sr(54 + 2 * e4, 2)}, v{thr}, {c}")
        k.e("s_nop 1")
        for e4 in range(4):
            k.e(f"v_cndmask_b32 v{S + r0 + e4}, v{S + r0 + e4}, v{ninf}, {sr(54 + 2 * e4, 2)}")
    softmax(slow2, back2)
    k.e("s_barrier")
    mphase(seq_pv())
    k.e(f"s_branch {skip2}")
    k.label(skipl)
    k.e("s_barrier"); k.e("s_barrier")
    k.label(skip2)
    g1a = k.newlabel("g1a")
    k.e("s_cmp_eq_u32 s38, 1"); k.e(f"s_cbranch_scc1 {g1a}"); k.e("s_barrier"); k.label(g1a)
    astamp(2, 5)
    k.e(f"v_add_f32 v{ls}, v{ls}, v{ls + 1}"); k.e(f"v_add_f32 v{ls + 2}, v{ls + 2}, v{ls + 3}")
    k.e(f"v_add_f32 v{ls}, v{ls}, v{ls + 2}"); k.e(f"v_mov_b32 v{t0}, v{ls}"); k.e("s_nop 1")
    k.e(f"v_permlane32_swap_b32 v{ls}, v{t0}"); k.e("s_nop 1")
    k.e(f"v_add_f32 v{mx + 1}, v{ls}, v{t0}")
    k.e(f"v_sub_f32 v{mx}, 0, v{NM}")
    k.e(f"v_mov_b32 v{t0}, 0xf149f2ca")
    k.e("s_cmp_lg_u32 s47, 0"); k.e("s_cselect_b64 vcc, -1, 0")
    k.e(f"v_cndmask_b32 v{mx}, v{mx}, v{t0}, vcc")
    k.e("s_lshl_b32 s48, s3, 13")
    k.e(f"v_add_u32 v{t1}, s48, v{l16}")
    k.e("s_xor_b32 s53, s3, 4"); k.e("s_lshl_b32 s53, s53, 13"); k.e(f"v_add_u32 v{t2}, s53, v{l16}")
    k.e("s_lshl_b32 s48, s3, 9"); k.e("s_add_u32 s48, s48, 0x10000")
    k.e(f"v_lshlrev_b32 v{t3}, 3, v{lane}"); k.e(f"v_add_u32 v{t0}, s48, v{t3}")
    k.e(f"ds_write_b64 v{t0}, {vr(mx, 2)}")
    k.e("s_xor_b32 s48, s48, 0x800"); k.e(f"v_add_u32 v{t3}, s48, v{t3}")
    mg1 = k.newlabel("mg1"); mgd = k.newlabel("mgd")
    k.e("s_cmp_eq_u32 s38, 1"); k.e(f"s_cbranch_scc1 {mg1}")
    def merge(g):
        keep = O + 32 * g; send = O + 32 * (1 - g)
        for i in range(8): k.e(f"ds_write_b128 v{t1}, {vr(send + 4 * i, 4)} offset:{i * 1024}")
        k.e("s_waitcnt lgkmcnt(0)"); k.e("s_barrier")
        k.e(f"ds_read_b64 {vr(ls, 2)}, v{t3}")
        for i in range(8): k.e(f"ds_read_b128 {vr(S + 4 * i, 4)}, v{t2} offset:{i * 1024}")
        k.e("s_waitcnt lgkmcnt(8)")
        k.e(f"v_max_f32 v{t0}, v{mx}, v{ls}")
        k.e(f"v_sub_f32 v{mx}, v{mx}, v{t0}"); k.e(f"v_sub_f32 v{ls}, v{ls}, v{t0}")
        k.e(f"v_exp_f32 v{mx}, v{mx}"); k.e(f"v_exp_f32 v{ls}, v{ls}"); k.e("s_nop 0")
        k.e(f"v_mul_f32 v{t0}, v{mx}, v{mx + 1}"); k.e(f"v_fmac_f32 v{t0}, v{ls}, v{ls + 1}")
        k.e(f"v_rcp_f32 v{t0}, v{t0}"); k.e("s_nop 0")
        k.e(f"v_mul_f32 v{mx}, v{mx}, v{t0}"); k.e(f"v_mul_f32 v{ls}, v{ls}, v{t0}")
        k.e("s_waitcnt lgkmcnt(0)")
        for i in range(32):
            k.e(f"v_mul_f32 v{keep + i}, v{keep + i}, v{mx}")
            k.e(f"v_fmac_f32 v{keep + i}, v{S + i}, v{ls}")
        k.e("s_lshl_b32 s48, s42, 2"); k.e("s_add_u32 s48, s48, s39"); k.e("s_lshl_b32 s48, s48, 18")
        k.e("s_lshl_b32 s53, s36, 13"); k.e("s_add_u32 s48, s48, s53")
        for f in range(4):
            for i in range(4):
                k.e(f"v_cvt_pk_bf16_f32 v{P + 4 * f + i}, v{keep + 8 * f + 2 * i}, v{keep + 8 * f + 2 * i + 1}")
            k.e(f"s_add_u32 s53, s48, {(4 * g + f) * 1024}")
            k.e(f"buffer_store_dwordx4 {vr(P + 4 * f, 4)}, v{l16}, {sr(20, 4)}, s53 offen")
    merge(0); k.e(f"s_branch {mgd}"); k.label(mg1); merge(1); k.label(mgd)
    k.e("s_barrier")
    astamp(3, 13)
    k.e("s_add_u32 s52, s52, 1"); k.e("s_mov_b32 s42, s37")
    k.e("s_cmp_lt_u32 s52, 2"); k.e(f"s_cbranch_scc1 {blk}")
    k.stamp_flush(2)
    if APROF:
        k.e("s_load_dwordx2 s[62:63], s[0:1], 104"); k.e("s_waitcnt lgkmcnt(0)")
        k.e(f"s_add_u32 s62, s62, 0x{100 * MB:x}"); k.e("s_addc_u32 s63, s63, 0")
        k.e("s_lshl_b32 s72, s2, 3"); k.e("s_add_u32 s72, s72, s3"); k.e("s_lshl_b32 s72, s72, 5")
        k.e("v_mov_b32 v0, s72")
        if APROF == "2":
            k.e("s_lshl_b32 s72, s72, 3"); k.e(f"v_add_u32 v0, s72, v{l16}"); k.e(f"v_lshrrev_b32 v1, 2, v{l16}"); k.e("v_add_u32 v0, s72, v1")
            k.e(f"global_store_dword v0, v{trv}, s[62:63]")
        for i in range(8 if APROF == "1" else 0):
            k.e(f"v_mov_b32 v1, s{64 + i}"); k.e(f"global_store_dword v0, v1, s[62:63] offset:{4 * i}")
    k.e(f"s_branch {end}")
    slowpath(slow1, back1); slowpath(slow2, back2)
    k.label(end)
    return k
```
